```python
import torch

def _softmax(x, axis=-1):
    return torch.softmax(x, dim=axis)
def _gelu(x):
    return torch.nn.functional.gelu(x, approximate="tanh")
def _silu(x):
    return torch.nn.functional.silu(x)
def _sigmoid(x):
    return torch.sigmoid(x)
def _layernorm(x, axis=-1, eps=1e-5):
    m = x.mean(dim=axis, keepdim=True)
    v = x.var(dim=axis, keepdim=True, unbiased=False)
    return (x - m) / torch.sqrt(v + eps)
def _scatter_add(tgt, idx, src, axis=0):
    return tgt.clone().index_add_(axis, idx, src)
def _segment_sum(src, seg, n):
    out = torch.zeros((n,) + src.shape[1:], dtype=src.dtype)
    return out.index_add_(0, seg, src)
def _pad(x, pw):
    flat = tuple(v for pair in reversed(pw) for v in pair)
    return torch.nn.functional.pad(x, flat)

kernel_name = 'recurrent_scan__softmax_full_mha__glu_gated_reglu__prompt'

def setup_inputs():

    _w = (lambda a: (lambda t: t.to(torch.bfloat16) if t.is_floating_point() else t)(torch.as_tensor(a)))
    def _A_setup():
        B, S, D = 1, 2048, 1024
        return {
            "x": _w((lambda *s: torch.randn(*s, dtype=torch.bfloat16) * 0.05)(B, S, D)),
            "wqkv": _w((lambda *s: torch.randn(*s, dtype=torch.bfloat16) * 0.2)(D, 3 * D)),
            "wo": _w((lambda *s: torch.randn(*s, dtype=torch.bfloat16) * 0.2)(D, D)),
        }
    _A_in = _A_setup()

    def _B_setup():
        B, S, D, F = 1, 2048, 1024, 3584
        return {
            "x": _w((lambda *s: torch.randn(*s, dtype=torch.bfloat16) * 0.05)(B, S, D)),
            "W_gate": _w((lambda *s: torch.randn(*s, dtype=torch.bfloat16) * 0.1)(D, F) * (2.0 / D) ** 0.5),
            "W_up": _w((lambda *s: torch.randn(*s, dtype=torch.bfloat16) * 0.1)(D, F) * (2.0 / D) ** 0.5),
            "W_down": _w((lambda *s: torch.randn(*s, dtype=torch.bfloat16) * 0.1)(F, D) * (1.0 / F) ** 0.5),
        }
    _B_in = _B_setup()

    return {
        "A_x": _A_in["x"],
        "A_wqkv": _A_in["wqkv"],
        "A_wo": _A_in["wo"],
        "B_x": _B_in["x"],
        "B_W_gate": _B_in["W_gate"],
        "B_W_up": _B_in["W_up"],
        "B_W_down": _B_in["W_down"],
    }

def reference(A_x, A_wqkv, A_wo, B_x, B_W_gate, B_W_up, B_W_down):
    def _A_ref(x, wqkv, wo):
        B, S, D = x.shape
        H = 32; Dh = D // H
        qkv = (lambda x, *d: x.permute(*d))((x @ wqkv).reshape(B, S, 3, H, Dh), 2, 0, 3, 1, 4)
        q, k, v = qkv[0], qkv[1], qkv[2]
        scale = Dh ** -0.5
        scores = torch.einsum("bhqd,bhkd->bhqk", q, k) * scale
        p = _softmax(scores, axis=-1)
        o = torch.einsum("bhqk,bhkd->bhqd", p, v)
        return (lambda x, *d: x.permute(*d))(o, 0, 2, 1, 3).reshape(B, S, D) @ wo

    def _B_ref(x, W_gate, W_up, W_down):
        gate = torch.einsum("bsd,df->bsf", x, W_gate)
        up = torch.einsum("bsd,df->bsf", x, W_up)
        gate = gate * (lambda x, dt: x.to(dt))(gate > 0, gate.dtype)
        h = gate * up
        return torch.einsum("bsf,fd->bsd", h, W_down)

    x = A_x
    xn = _layernorm(x, axis=-1)
    s = _A_ref(xn, A_wqkv, A_wo)
    g = _silu(_B_ref(xn, B_W_gate, B_W_up, B_W_down))
    return x + s * g
```

```python
class Asm:
    def __init__(self):
        self.lines = []
        self.uid = 0
    def __call__(self, s):
        for ln in s.strip("\n").split("\n"):
            ln = ln.rstrip()
            if not ln:
                continue
            t = ln.strip()
            if t.endswith(":") and " " not in t:
                self.lines.append(t)
            else:
                self.lines.append("    " + t)
    def label(self, name):
        self.lines.append(name + ":")
    def newlabel(self, stem):
        self.uid += 1
        return f"L_{stem}_{self.uid}"
    def comment(self, s):
        self.lines.append("    ; " + s)
    def text(self):
        return "\n".join(self.lines) + "\n"

def vr(base, n=1):
    return f"v{base}" if n == 1 else f"v[{base}:{base+n-1}]"
def sr(base, n=1):
    return f"s{base}" if n == 1 else f"s[{base}:{base+n-1}]"

def interleave(main, fillers):
    out = []
    for i, m in enumerate(main):
        out.append(m)
        if i < len(fillers):
            out.extend(fillers[i])
    for j in range(len(main), len(fillers)):
        out.extend(fillers[j])
    return out

def kernel_header(name):
    return f""".globl {name}
.p2align 8
.type {name},@function
{name}:
"""

def kernel_desc(name, vgpr, sgpr=102, accum=None):
    if accum is None:
        accum = (vgpr + 3) // 4 * 4
    return f""".amdhsa_kernel {name}
  .amdhsa_next_free_vgpr {vgpr}
  .amdhsa_next_free_sgpr {sgpr}
  .amdhsa_accum_offset {accum}
  .amdhsa_group_segment_fixed_size 0
  .amdhsa_kernarg_size 80
  .amdhsa_user_sgpr_count 2
  .amdhsa_user_sgpr_kernarg_segment_ptr 1
  .amdhsa_system_sgpr_workgroup_id_x 1
  .amdhsa_float_denorm_mode_32 3
.end_amdhsa_kernel
"""
```

```python
from asmlib import *
from layout import *
import struct

NAME = "attn_kernel"
RING = 65536
FLAG = RING
MXCH = RING + 64
LXCH = MXCH + 4096
LDS = LXCH + 2048
DELTA = 108.0
LMAX = 2.0 ** 120

QA, QB = 8, 16
KF_, VF_ = 24, 32
SEL = 40
PA, PB = 44, 52
LA, LB = 60, 64
SA, SB = 68, 84
MA, MB = 100, 116
OA, OB = 132, 148
KP = 164
VADDR = 228
MXA, MXB = 229, 230
L16 = 231
NVGPR = 232

SRD_MY, SRD_WS = 8, 16
S_W, S_HEAD, S_QB, S_MODE = 20, 21, 22, 23
S_SOFF, S_M0, S_CNT, S_HF = 24, 25, 26, 27
S_T = 28
S_KB = 36
S_P = 37
S_SOFF0 = 38

def f32hex(x):
    return "0x%08x" % struct.unpack("<I", struct.pack("<f", x))[0]

PROF = False
PAD = 0
NORS = False
def stamp(a, i):
    if PROF:
        a(f"s_memtime s[{70+4*i}:{71+4*i}]")
        a(f"s_memrealtime s[{72+4*i}:{73+4*i}]")

def prof_store(a):
    if not PROF: return
    a(f"""
    s_waitcnt lgkmcnt(0)
    s_lshl_b32 s{S_T}, s2, 3
    s_add_u32 s{S_T}, s{S_T}, s{S_W}
    s_lshl_b32 s{S_T}, s{S_T}, 6
    s_add_u32 s{S_T}, s{S_T}, {PROF_OFF + 0x100000}
    s_mov_b32 s{SRD_WS+2}, 0x4000000
    """)
    for i in range(4):
        a(f"v_mov_b32 v{4+2*i}, s{70+4*i}")
        a(f"v_mov_b32 v{5+2*i}, s{72+4*i}")
    a(f"""
    v_mov_b32 v2, 0
    buffer_store_dwordx4 v[4:7], v2, {sr(SRD_WS,4)}, s{S_T} offen
    buffer_store_dwordx4 v[8:11], v2, {sr(SRD_WS,4)}, s{S_T} offen offset:16
    """)

def m32(d, A, B, C):
    return f"v_mfma_f32_32x32x16_bf16 {vr(d,16)}, {vr(A,4)}, {vr(B,4)}, {C}"
def m16(d, A, B):
    return f"v_mfma_f32_16x16x32_bf16 {vr(d,4)}, {vr(A,4)}, {vr(B,4)}, {vr(d,4)}"

def phase(a, x, kreads, vreads, extra, kwait, vwait):
    if x == 0: S, P, Sy, Py, Qy, My, Oy, Ly = SA, PA, SB, PB, QB, MB, OB, LB
    else:      S, P, Sy, Py, Qy, My, Oy, Ly = SB, PB, SA, PA, QA, MA, OA, LA
    E = [f"v_exp_f32 v{S+j}, v{S+j}" for j in range(16)]
    C = [f"v_cvt_pk_bf16_f32 v{P+k}, v{S+2*k}, v{S+2*k+1}" for k in range(8)]
    ex = list(extra)
    def X(n):
        out = ex[:n]; del ex[:n]; return out
    seq = []
    if kwait: seq.append(kwait)
    seq += [m32(Sy, KF_, Qy, vr(My,16)), E[0], E[1], E[2]] + X(2)
    if vwait: seq.append(vwait)
    seq += [m32(Oy, VF_, Py, vr(Oy,16)), E[3], C[0], E[4], E[5]] + X(2)
    seq += [m32(Sy, KF_+4, Qy+4, vr(Sy,16)), C[1], E[6]] + kreads + [E[7], E[8]] + X(2)
    seq += [m32(Oy, VF_+4, Py+4, vr(Oy,16)), C[2], C[3], E[9]] + vreads + [E[10]] + X(2)
    seq += [m16(Ly, SEL, Py), E[11], C[4], E[12]]
    seq += [m16(Ly, SEL, Py+4), E[13], C[5], E[14], E[15], C[6]] + X(99) + [C[7]]
    if PAD: seq.append(f"s_nop {PAD-1}")
    if NORS: seq = [s for s in seq if "16x16x32" not in s]
    for s in seq: a(s)

def max_tiles(a, kregs):
    bufa, bufb = [SA, MA], [SB, MB]
    def mx(dst, buf, lo):
        return [f"v_max3_f32 v{dst}, v{buf+2*k}, v{buf+2*k+1}, v{dst}" for k in range(lo, lo+4)]
    n = len(kregs)
    for i in range(n + 1):
        if i < n:
            k = kregs[i]
            mm = [m32(bufa[i&1], k, QA, "0"), m32(bufa[i&1], k+4, QA+4, vr(bufa[i&1],16)),
                  m32(bufb[i&1], k, QB, "0"), m32(bufb[i&1], k+4, QB+4, vr(bufb[i&1],16))]
        else:
            mm = ["s_nop 7", "s_nop 3", "s_nop 7", "s_nop 3"]
        pv = [[], [], [], []]
        if i > 0:
            j = (i-1) & 1
            pv = [mx(MXA, bufa[j], 0), mx(MXA, bufa[j], 4), mx(MXB, bufb[j], 0), mx(MXB, bufb[j], 4)]
        for m, f in zip(mm, pv):
            a(m)
            for s in f: a(s)

def half_max(a):
    for mxr in (MXA, MXB):
        a(f"""
        v_mov_b32 v2, v{mxr}
        s_nop 1
        v_permlane32_swap_b32 v{mxr}, v2
        s_nop 1
        v_max_f32 v{mxr}, v{mxr}, v2
        """)

def set_negm(a, delta):
    for mxr, M in ((MXA, MA), (MXB, MB)):
        a(f"v_sub_f32 v2, {f32hex(-delta) if delta else 0}, v{mxr}")
        for j in range(16):
            a(f"v_mov_b32 v{M+j}, v2")

def dma():
    return [f"buffer_load_dwordx4 v{L16}, {sr(SRD_MY,4)}, s{S_SOFF} offen lds",
            f"buffer_load_dwordx4 v{L16}, {sr(SRD_MY,4)}, s{S_SOFF} offen offset:1024 lds",
            f"s_add_u32 s{S_SOFF}, s{S_SOFF}, 4096"]

def stage(a, j, do_dma, vm, last_in_loop=False):
    slot = j & 3
    a(f"s_waitcnt vmcnt({vm})")
    a("s_barrier")
    D = dma()
    for u in range(2):
        base = slot*16384 + u*4096
        kr = [f"ds_read_b128 {vr(KF_+4*f,4)}, v{VADDR} offset:{base+f*1024}" for f in range(2)]
        vrd = [f"ds_read_b128 {vr(VF_+4*f,4)}, v{VADDR} offset:{base+2048+f*1024}" for f in range(2)]
        ex1, ex2 = [], []
        if u == 0 and do_dma:
            ex1 = [f"s_add_u32 m0, s{S_M0}, {((j+3)&3)*16384}", "s_nop 0", D[0]]
            ex2 = [D[1], D[2]]
        if u == 1 and last_in_loop:
            ex2 = [f"s_sub_u32 s{S_CNT}, s{S_CNT}, 1", f"s_cmp_lg_u32 s{S_CNT}, 0"]
        phase(a, 0, kr, vrd, ex1, None, None)
        phase(a, 1, [], [], ex2, "s_waitcnt lgkmcnt(2)", "s_waitcnt lgkmcnt(0)")

def gen():
    a = Asm()
    a(f"""
    s_cmp_ge_u32 s2, 256
    s_cbranch_scc1 L_at_end
    """)
    stamp(a, 0)
    a(f"""
    s_load_dwordx2 s[4:5], s[0:1], {KA_WS}
    v_lshrrev_b32 v2, 6, v0
    v_and_b32 v1, 63, v0
    s_and_b32 s{S_T}, s2, 7
    s_bfe_u32 s{S_T+1}, s2, 0x20003
    s_lshl_b32 s{S_HEAD}, s{S_T}, 2
    s_add_u32 s{S_HEAD}, s{S_HEAD}, s{S_T+1}
    s_lshr_b32 s{S_QB}, s2, 5
    v_readfirstlane_b32 s{S_W}, v2
    v_lshlrev_b32 v{L16}, 4, v1
    s_lshl_b32 s{S_KB}, s{S_HEAD}, 17
    s_mov_b32 s{S_MODE}, 0
    s_and_b32 s{S_P}, s{S_W}, 3
    s_lshr_b32 s{S_HF}, s{S_W}, 2
    s_lshl_b32 s{S_T}, s{S_QB}, 3
    s_lshl_b32 s{S_T+1}, s{S_P}, 1
    s_add_u32 s{S_T}, s{S_T}, s{S_T+1}
    s_lshl_b32 s{S_T+2}, s{S_T}, 11
    s_add_u32 s{S_T+2}, s{S_T+2}, s{S_KB}
    s_add_u32 s{S_T+2}, s{S_T+2}, {QF_OFF}
    s_lshl_b32 s{S_T+5}, s{S_HF}, 16
    s_add_u32 s{S_T+5}, s{S_T+5}, s{S_KB}
    s_and_b32 s{S_T+6}, s{S_P}, 1
    s_cmp_eq_u32 s{S_T+6}, 0
    s_cselect_b32 s{S_T+3}, 0, {VF_OFF - KF_OFF - 2048}
    s_cselect_b32 s{S_T+4}, s{S_HF}, 0
    s_add_u32 s{S_T+3}, s{S_T+3}, {KF_OFF + 2048}
    s_add_u32 s{S_T+3}, s{S_T+3}, s{S_T+5}
    s_lshl_b32 s{S_T+4}, s{S_T+4}, 11
    s_sub_u32 s{S_T+4}, 65536, s{S_T+4}
    s_lshr_b32 s{S_T}, s{S_P}, 1
    s_lshl_b32 s{S_SOFF0}, s{S_T}, 11
    s_lshl_b32 s{S_M0}, s{S_T}, 12
    s_lshl_b32 s{S_T+6}, s{S_T+6}, 11
    s_add_u32 s{S_M0}, s{S_M0}, s{S_T+6}
    s_lshl_b32 s{S_T}, s{S_HF}, 13
    s_add_u32 s{S_M0}, s{S_M0}, s{S_T}
    v_add_u32 v{VADDR}, s{S_T}, v{L16}
    s_add_u32 s{S_KB}, s{S_T+5}, {KF_OFF}
    s_waitcnt lgkmcnt(0)
    s_mov_b32 s{SRD_WS}, s4
    s_mov_b32 s{SRD_WS+1}, s5
    s_mov_b32 s{SRD_WS+2}, {WS_USED}
    s_mov_b32 s{SRD_WS+3}, 0x20000
    s_add_u32 s{SRD_MY}, s4, s{S_T+3}
    s_addc_u32 s{SRD_MY+1}, s5, 0
    s_mov_b32 s{SRD_MY+2}, s{S_T+4}
    s_mov_b32 s{SRD_MY+3}, 0x20000
    """)
    for t in range(2):
        for f in range(2):
            a(f"buffer_load_dwordx4 {vr(QA+8*t+4*f,4)}, v{L16}, {sr(SRD_WS,4)}, s{S_T+2} offen offset:{t*2048+f*1024}")
    a("L_at_restart:")
    a(f"s_mov_b32 s{S_SOFF}, s{S_SOFF0}")
    D = dma()
    for st in range(2):
        a(f"s_add_u32 m0, s{S_M0}, {st*16384}")
        a("s_nop 0")
        for d in D: a(d)
    for f in range(2):
        a(f"buffer_load_dwordx4 {vr(KF_+4*f,4)}, v{L16}, {sr(SRD_WS,4)}, s{S_KB} offen offset:{f*1024}")
    a(f"s_add_u32 m0, s{S_M0}, {2*16384}")
    a("s_nop 0")
    for d in D: a(d)
    a(f"""
    v_mov_b32 v2, 0
    v_mov_b32 v3, {FLAG}
    ds_write_b32 v3, v2
    v_bfe_u32 v4, v1, 4, 1
    v_bfe_u32 v5, v1, 2, 1
    v_cmp_eq_u32 vcc, v4, v5
    v_mov_b32 v6, 0x3f803f80
    v_cndmask_b32 v{SEL}, 0, v6, vcc
    """)
    for j in range(1, 4): a(f"v_mov_b32 v{SEL+j}, v{SEL}")
    for r, n in ((VF_, 8), (PB, 8), (LA, 4), (LB, 4), (OA, 16), (OB, 16)):
        for j in range(n): a(f"v_mov_b32 v{r+j}, 0")
    a(f"""
    s_waitcnt vmcnt(4) lgkmcnt(0)
    s_barrier
    s_cmp_eq_u32 s{S_MODE}, 0
    s_cbranch_scc0 L_at_havem
    """)
    for i in range(4):
        for f in range(2):
            a(f"ds_read_b128 {vr(KP+8*i+4*f,4)}, v{VADDR} offset:{(i>>1)*16384 + (i&1)*4096 + f*1024}")
    a(f"v_mov_b32 v{MXA}, 0xff800000")
    a(f"v_mov_b32 v{MXB}, 0xff800000")
    a("s_waitcnt lgkmcnt(0)")
    max_tiles(a, [KP+8*i for i in range(4)])
    half_max(a)
    a(f"""
    v_lshlrev_b32 v3, 2, v1
    s_lshl_b32 s{S_T}, s{S_W}, 9
    s_xor_b32 s{S_T+1}, s{S_T}, 2048
    s_add_u32 s{S_T}, s{S_T}, {MXCH}
    s_add_u32 s{S_T+1}, s{S_T+1}, {MXCH}
    v_add_u32 v4, s{S_T}, v3
    v_add_u32 v5, s{S_T+1}, v3
    ds_write_b32 v4, v{MXA}
    ds_write_b32 v4, v{MXB} offset:256
    s_waitcnt lgkmcnt(0)
    s_barrier
    ds_read_b32 v6, v5
    ds_read_b32 v7, v5 offset:256
    s_waitcnt lgkmcnt(0)
    v_max_f32 v{MXA}, v{MXA}, v6
    v_max_f32 v{MXB}, v{MXB}, v7
    """)
    set_negm(a, DELTA)
    a("L_at_havem:")
    a("s_waitcnt vmcnt(2)")
    a(m32(SA, KF_, QA, vr(MA,16)))
    a(m32(SA, KF_+4, QA+4, vr(SA,16)))
    a(f"s_mov_b32 s{S_CNT}, 3")
    a("s_nop 7")
    a("s_nop 3")
    stamp(a, 1)
    a(".p2align 6")
    a("L_at_loop:")
    for j in range(4):
        stage(a, j, True, 4, last_in_loop=(j == 3))
    a("s_cbranch_scc1 L_at_loop")
    stage(a, 12, True, 4)
    stage(a, 13, False, 4)
    stage(a, 14, False, 2)
    stage(a, 15, False, 0)
    stamp(a, 2)
    a(m32(OB, VF_, PB, vr(OB,16)))
    a(m16(LB, SEL, PB))
    a(m32(OB, VF_+4, PB+4, vr(OB,16)))
    a(m16(LB, SEL, PB+4))
    a(f"""
    s_lshl_b32 s{S_T}, s{S_W}, 12
    s_xor_b32 s{S_T+1}, s{S_T}, 16384
    v_add_u32 v4, s{S_T}, v{L16}
    v_add_u32 v5, s{S_T+1}, v{L16}
    v_lshlrev_b32 v3, 2, v1
    s_lshl_b32 s{S_T}, s{S_W}, 8
    s_xor_b32 s{S_T+1}, s{S_T}, 1024
    s_add_u32 s{S_T}, s{S_T}, {LXCH}
    s_add_u32 s{S_T+1}, s{S_T+1}, {LXCH}
    v_add_u32 v6, s{S_T}, v3
    v_add_u32 v7, s{S_T+1}, v3
    v_and_b32 v2, 15, v1
    v_lshlrev_b32 v2, 4, v2
    v_lshrrev_b32 v3, 5, v1
    v_lshl_add_u32 v2, v3, 8, v2
    v_bfe_u32 v3, v1, 4, 1
    v_lshl_add_u32 v2, v3, 15, v2
    s_lshl_b32 s{S_T}, s{S_QB}, 3
    s_lshl_b32 s{S_T+1}, s{S_P}, 1
    s_add_u32 s{S_T}, s{S_T}, s{S_T+1}
    s_add_u32 s{S_T}, s{S_T}, s{S_HF}
    s_lshl_b32 s{S_T}, s{S_T}, 16
    s_lshl_b32 s{S_T+1}, s{S_HEAD}, 10
    s_add_u32 s{S_T}, s{S_T}, s{S_T+1}
    s_add_u32 s{S_T}, s{S_T}, {OF_OFF}
    s_mov_b32 s{S_T+2}, {f32hex(LMAX)}
    s_cmp_eq_u32 s{S_HF}, 0
    s_cbranch_scc0 L_at_x1
    """)
    def xch(send_o, send_l, keep_o, keep_l):
        for k in range(4):
            a(f"ds_write_b128 v4, {vr(send_o+4*k,4)} offset:{k*1024}")
        a(f"ds_write_b32 v6, v{send_l}")
        a("s_waitcnt lgkmcnt(0)")
        a("s_barrier")
        for k in range(4):
            a(f"ds_read_b128 {vr(SA+4*k,4)}, v5 offset:{k*1024}")
        a(f"ds_read_b32 v{KP}, v7")
        a("s_waitcnt lgkmcnt(0)")
        a(f"v_add_f32 v{KP}, v{KP}, v{keep_l}")
        a(f"v_rcp_f32 v{KP+2}, v{KP}")
        a(f"v_cmp_nle_f32 vcc, v{KP}, s{S_T+2}")
        for j in range(16):
            a(f"v_add_f32 v{SA+j}, v{SA+j}, v{keep_o+j}")
        a("s_branch L_at_xdone" if keep_o == OA else "")
    a("s_nop 7")
    xch(OB, LB, OA, LA)
    a("L_at_x1:")
    xch(OA, LA, OB, LB)
    a("L_at_xdone:")
    for k in range(8):
        a(f"v_pk_mul_f32 {vr(SA+2*k,2)}, {vr(SA+2*k,2)}, {vr(KP+2,2)} op_sel_hi:[1,0]")
    order = [0, 1, 4, 5, 2, 3, 6, 7]
    for i, k in enumerate(order):
        a(f"v_cvt_pk_bf16_f32 v{SB+i}, v{SA+2*k}, v{SA+2*k+1}")
    a(f"buffer_store_dwordx4 {vr(SB,4)}, v2, {sr(SRD_WS,4)}, s{S_T} offen")
    a(f"buffer_store_dwordx4 {vr(SB+4,4)}, v2, {sr(SRD_WS,4)}, s{S_T} offen offset:512")
    a(f"""
    s_cmp_eq_u32 s{S_MODE}, 0
    s_cbranch_scc0 L_at_fin
    s_cmp_eq_u64 vcc, 0
    s_cbranch_scc1 L_at_noflag
    v_mov_b32 v4, 1
    v_mov_b32 v3, {FLAG}
    ds_write_b32 v3, v4
L_at_noflag:
    s_waitcnt lgkmcnt(0)
    s_barrier
    v_mov_b32 v3, {FLAG}
    ds_read_b32 v4, v3
    s_waitcnt lgkmcnt(0)
    v_readfirstlane_b32 s{S_T}, v4
    s_cmp_eq_u32 s{S_T}, 0
    s_cbranch_scc1 L_at_fin
    s_mov_b32 s{S_MODE}, 1
    v_mov_b32 v{MXA}, 0xff800000
    v_mov_b32 v{MXB}, 0xff800000
    s_lshl_b32 s{S_T}, s{S_HEAD}, 17
    s_add_u32 s{S_T}, s{S_T}, {KF_OFF}
    s_mov_b32 s{S_CNT}, 8
L_at_fb:
    """)
    for i in range(8):
        if i and i % 2 == 0: a(f"s_add_u32 s{S_T}, s{S_T}, 4096")
        for f in range(2):
            a(f"buffer_load_dwordx4 {vr(KP+8*i+4*f,4)}, v{L16}, {sr(SRD_WS,4)}, s{S_T} offen offset:{(i&1)*2048+f*1024}")
    a(f"s_add_u32 s{S_T}, s{S_T}, 4096")
    a("s_waitcnt vmcnt(0)")
    max_tiles(a, [KP+8*i for i in range(8)])
    a(f"""
    s_sub_u32 s{S_CNT}, s{S_CNT}, 1
    s_cmp_lg_u32 s{S_CNT}, 0
    s_cbranch_scc1 L_at_fb
    """)
    half_max(a)
    set_negm(a, 0)
    a("s_waitcnt vmcnt(0)")
    a("s_barrier")
    a("s_branch L_at_restart")
    a("L_at_fin:")
    if PROF:
        a("s_waitcnt vmcnt(0)")
        stamp(a, 3)
        prof_store(a)
    a("L_at_end:")
    a("s_endpgm")
    return a.text()
```

```python
from asmlib import *
from layout import *
import struct

NAME = "final_kernel"
NS = 6
SLOT = 24576
XO = 8192
LDS = NS * SLOT
NST_FF, NST = 56, 72
TA, XA = 10, 18
VX0, VX1, VWA, VWB, L16, VXO = 20, 21, 22, 23, 24, 25
WB0, WB1, XB0, XB1 = 28, 44, 60, 68
ACF, ACS, XIN = 76, 108, 140
NVGPR = 160
SRD_W, SRD_X, SRD_IN, SRD_OUT = 8, 12, 16, 20
S_W, S_MT, S_NT, S_ISS, S_NEXT, S_CNT = 24, 25, 26, 27, 28, 29
S_SW, S_SX, S_M0W, S_M0X = 30, 31, 32, 33
S_WO = 34
S_OX = 36
S_XO = 38
S_T = 40

def f32hex(x):
    return "0x%08x" % struct.unpack("<I", struct.pack("<f", x))[0]

PROF = False
EXP = ""
def stamp(a, i):
    if PROF:
        a(f"s_memtime s[{70+4*i}:{71+4*i}]")
        a(f"s_memrealtime s[{72+4*i}:{73+4*i}]")
def prof_store(a):
    if not PROF: return
    a(f"""
    s_waitcnt lgkmcnt(0)
    s_lshl_b32 s{S_T}, s2, 3
    s_add_u32 s{S_T}, s{S_T}, s{S_W}
    s_lshl_b32 s{S_T}, s{S_T}, 6
    s_add_u32 s{S_T}, s{S_T}, {PROF_OFF + 0x200000}
    s_mov_b32 s{SRD_X+2}, 0x4000000
    """)
    for i in range(4):
        a(f"v_mov_b32 v{4+2*i}, s{70+4*i}")
        a(f"v_mov_b32 v{5+2*i}, s{72+4*i}")
    a(f"""
    v_mov_b32 v2, 0
    buffer_store_dwordx4 v[4:7], v2, {sr(SRD_X,4)}, s{S_T} offen
    buffer_store_dwordx4 v[8:11], v2, {sr(SRD_X,4)}, s{S_T} offen offset:16
    """)

def acc(base, t, b): return base + (t*4 + b)*4
def mfmas(k, base, czero=False):
    wb = WB1 if k else WB0
    xb = XB1 if k else XB0
    return [f"v_mfma_f32_16x16x32_bf16 {vr(acc(base,t,b),4)}, {vr(wb+4*b,4)}, {vr(xb+4*t,4)}, "
            + ("0" if czero else vr(acc(base,t,b),4)) for b in range(4) for t in range(2)]
def reads(k, slot):
    wb = WB1 if k else WB0
    xb = XB1 if k else XB0
    hi, lo = slot // 3, (slot % 3)*SLOT
    r = [f"ds_read_b128 {vr(xb+4*t,4)}, v{XA+hi} offset:{lo + (2*t+k)*1024}" for t in range(2)]
    r += [f"ds_read_b64_tr_b16 {vr(wb+4*b+2*x,2)}, v{TA+4*hi+b} offset:{lo + k*4096 + x*2048}"
          for b in range(4) for x in range(2)]
    return r
def loads(slot):
    return [f"s_add_u32 m0, s{S_M0W}, {slot*SLOT}", "s_nop 0",
            f"buffer_load_dwordx4 v{VWA}, {sr(SRD_W,4)}, s{S_SW} offen lds",
            f"buffer_load_dwordx4 v{VWB}, {sr(SRD_W,4)}, s{S_SW} offen offset:1024 lds",
            f"s_add_u32 m0, s{S_M0X}, {slot*SLOT}",
            f"s_add_u32 s{S_SW}, s{S_SW}, 131072",
            f"buffer_load_dwordx4 v{VX0}, {sr(SRD_X,4)}, s{S_SX} offen lds",
            f"buffer_load_dwordx4 v{VX0}, {sr(SRD_X,4)}, s{S_SX} offen offset:1024 lds",
            f"buffer_load_dwordx4 v{VX1}, {sr(SRD_X,4)}, s{S_SX} offen offset:2048 lds",
            f"buffer_load_dwordx4 v{VX1}, {sr(SRD_X,4)}, s{S_SX} offen offset:3072 lds",
            f"s_add_u32 s{S_SX}, s{S_SX}, 2048"]

def silu(j):
    d = ACF + j
    return [f"v_mul_f32 v2, {f32hex(-1.4426950408889634)}, v{d}",
            "v_exp_f32 v2, v2", "s_nop 0",
            "v_add_f32 v2, 1.0, v2",
            "v_rcp_f32 v2, v2", "s_nop 0",
            f"v_mul_f32 v{d}, v{d}, v2"]

def interval(a, s, first=False, extra=()):
    slot = s % NS
    prev_base = ACF if s - 1 < NST_FF else ACS
    cur_base = ACF if s < NST_FF else ACS
    r0, r1 = reads(0, slot), reads(1, slot)
    ex = list(extra)
    if first:
        for r in r0: a(r)
    else:
        m1 = mfmas(1, prev_base)
        for i in range(8):
            a(m1[i])
            if i < 2: a(r0[2*i]); a(r0[2*i+1])
            else: a(r0[i+2])
    a("s_waitcnt lgkmcnt(0)")
    m0 = mfmas(0, cur_base, czero=(s == 0 or s == NST_FF))
    per = (len(ex) + 5) // 6
    for i in range(8):
        a(m0[i])
        if i < 2: a(r1[2*i]); a(r1[2*i+1])
        else:
            a(r1[i+2])
            for x in ex[:per]: a(x)
            del ex[:per]
    a("s_waitcnt lgkmcnt(0)")
    a("s_barrier")

def gen():
    a = Asm()
    a(f"""
    s_cmp_ge_u32 s2, 256
    s_cbranch_scc1 L_fi_end
    """)
    stamp(a, 0)
    a(f"""
    s_load_dwordx2 s[4:5], s[0:1], {KA_WD}
    s_load_dwordx2 s[6:7], s[0:1], {KA_WS}
    s_load_dwordx2 s[44:45], s[0:1], {KA_WO}
    s_load_dwordx2 s[46:47], s[0:1], {KA_X}
    s_load_dwordx2 s[48:49], s[0:1], {KA_OUT}
    v_lshrrev_b32 v2, 6, v0
    v_and_b32 v1, 63, v0
    s_and_b32 s{S_T}, s2, 7
    s_lshr_b32 s{S_T+1}, s2, 3
    s_lshl_b32 s{S_MT}, s{S_T}, 1
    s_and_b32 s{S_T+2}, s{S_T+1}, 1
    s_add_u32 s{S_MT}, s{S_MT}, s{S_T+2}
    s_lshr_b32 s{S_NT}, s{S_T+1}, 1
    v_readfirstlane_b32 s{S_W}, v2
    v_lshlrev_b32 v{L16}, 4, v1
    s_lshl_b32 s{S_T+2}, s{S_NT}, 7
    s_cmp_ge_u32 s{S_W}, 4
    s_cbranch_scc0 L_fi_compute
    """)
    a(f"""
    s_sub_u32 s{S_W}, s{S_W}, 4
    v_and_b32 v4, 7, v1
    v_bfe_u32 v5, v1, 4, 2
    v_lshlrev_b32 v5, 1, v5
    v_xor_b32 v4, v4, v5
    v_lshlrev_b32 v4, 4, v4
    v_lshrrev_b32 v3, 3, v1
    s_lshl_b32 s{S_T}, s{S_W}, 4
    v_add_u32 v3, s{S_T}, v3
    v_lshl_add_u32 v{VWA}, v3, 11, v4
    v_add_u32 v{VWB}, {16384 - 1024}, v{VWA}
    v_mov_b32 v{VX0}, v{L16}
    v_add_u32 v{VX1}, {114688 - 2048}, v{L16}
    s_lshl_b32 s{S_M0W}, s{S_W}, 11
    s_lshl_b32 s{S_M0X}, s{S_W}, 12
    s_add_u32 s{S_M0X}, s{S_M0X}, {XO}
    s_lshl_b32 s{S_T}, s{S_MT}, 3
    s_lshl_b32 s{S_T+1}, s{S_W}, 1
    s_add_u32 s{S_T}, s{S_T}, s{S_T+1}
    s_mul_i32 s{S_SX}, s{S_T}, 114688
    s_add_u32 s{S_SX}, s{S_SX}, {HF_OFF}
    s_lshl_b32 s{S_OX}, s{S_T}, 15
    s_add_u32 s{S_OX}, s{S_OX}, {OF_OFF}
    s_mov_b32 s{S_SW}, 0
    s_mov_b32 s{S_NEXT}, {NST_FF}
    s_waitcnt lgkmcnt(0)
    s_add_u32 s{SRD_W}, s4, s{S_T+2}
    s_addc_u32 s{SRD_W+1}, s5, 0
    s_sub_u32 s{SRD_W+2}, {F*D*2}, s{S_T+2}
    s_mov_b32 s{SRD_W+3}, 0x20000
    s_mov_b32 s{SRD_X}, s6
    s_mov_b32 s{SRD_X+1}, s7
    s_mov_b32 s{SRD_X+2}, {WS_USED}
    s_mov_b32 s{SRD_X+3}, 0x20000
    """)
    if EXP == "now": a(f"s_mov_b32 s{SRD_W+2}, 0")
    if EXP == "nox": a(f"s_mov_b32 s{SRD_X+2}, 0")
    for st in range(5):
        for s in loads(st): a(s)
    a(f"""
    s_add_u32 s{S_WO}, s44, s{S_T+2}
    s_addc_u32 s{S_WO+1}, s45, 0
    s_mov_b32 s{S_ISS}, 5
    s_mov_b32 s{S_CNT}, {NST // NS}
    s_waitcnt vmcnt(24)
    s_barrier
    """)
    stamp(a, 1)
    a(".p2align 6")
    a("L_fi_lloop:")
    for s in range(NS):
        prev = (s + NS - 1) % NS
        a(f"s_cmp_eq_u32 s{S_ISS}, s{S_NEXT}")
        a(f"s_cbranch_scc1 L_fi_sw{s}")
        a(f"L_fi_swr{s}:")
        for x in loads(prev): a(x)
        a(f"s_add_u32 s{S_ISS}, s{S_ISS}, 1")
        if s == NS - 1:
            a(f"s_sub_u32 s{S_CNT}, s{S_CNT}, 1")
            a(f"s_cmp_lg_u32 s{S_CNT}, 0")
        a("s_waitcnt vmcnt(24)")
        a("s_barrier")
    a("s_cbranch_scc1 L_fi_lloop")
    stamp(a, 2)
    if PROF:
        a("s_add_u32 s24, s24, 4")
        stamp(a, 3)
        prof_store(a)
    a("s_endpgm")
    for s in range(NS):
        a(f"L_fi_sw{s}:")
        a(f"s_cmp_eq_u32 s{S_NEXT}, {NST_FF}")
        a(f"s_cbranch_scc0 L_fi_sw2_{s}")
        a(f"""
        s_mov_b32 s{SRD_W}, s{S_WO}
        s_mov_b32 s{SRD_W+1}, s{S_WO+1}
        s_lshl_b32 s{S_T}, s{S_NT}, 7
        s_sub_u32 s{SRD_W+2}, {D*D*2}, s{S_T}
        {"s_mov_b32 s%d, 0" % (SRD_W+2) if EXP == "now" else ""}
        s_mov_b32 s{S_SW}, 0
        s_mov_b32 s{S_SX}, s{S_OX}
        v_add_u32 v{VX1}, {32768 - 2048}, v{L16}
        s_mov_b32 s{S_NEXT}, {NST}
        s_branch L_fi_swr{s}
        """)
        a(f"L_fi_sw2_{s}:")
        a(f"""
        s_mov_b32 s{SRD_W+2}, 0
        s_mov_b32 s{SRD_X+2}, 0
        s_mov_b32 s{S_NEXT}, 0xffff
        s_branch L_fi_swr{s}
        """)
    a("L_fi_compute:")
    a(f"""
    s_lshl_b32 s{S_XO}, s{S_MT}, 18
    s_add_u32 s{S_XO}, s{S_XO}, s{S_T+2}
    s_add_u32 s{S_XO+1}, s{S_XO}, 32768
    v_and_b32 v4, 15, v1
    s_lshl_b32 s{S_T}, s{S_W}, 5
    v_add_u32 v4, s{S_T}, v4
    v_lshlrev_b32 v4, 11, v4
    v_bfe_u32 v5, v1, 4, 1
    v_lshl_add_u32 v4, v5, 5, v4
    v_lshrrev_b32 v5, 5, v1
    v_lshl_add_u32 v{VXO}, v5, 4, v4
    v_lshrrev_b32 v3, 4, v1
    v_bfe_u32 v4, v1, 2, 2
    v_and_b32 v5, 3, v1
    v_lshl_add_u32 v6, v3, 2, v4
    v_lshrrev_b32 v7, 1, v6
    v_and_b32 v7, 3, v7
    v_lshlrev_b32 v7, 5, v7
    v_lshlrev_b32 v6, 7, v6
    v_lshl_add_u32 v6, v5, 3, v6
    """)
    for b in range(4):
        a(f"v_xor_b32 v8, {32*b}, v7")
        a(f"v_add_u32 v{TA+b}, v6, v8")
        a(f"v_add_u32 v{TA+4+b}, {3*SLOT}, v{TA+b}")
    a(f"""
    s_lshl_b32 s{S_T}, s{S_W}, 12
    s_add_u32 s{S_T}, s{S_T}, {XO}
    v_add_u32 v{XA}, s{S_T}, v{L16}
    v_add_u32 v{XA+1}, {3*SLOT}, v{XA}
    s_waitcnt lgkmcnt(0)
    s_mov_b32 s{SRD_IN}, s46
    s_mov_b32 s{SRD_IN+1}, s47
    s_mov_b32 s{SRD_IN+2}, {S*D*2}
    s_mov_b32 s{SRD_IN+3}, 0x20000
    s_mov_b32 s{SRD_OUT}, s48
    s_mov_b32 s{SRD_OUT+1}, s49
    s_mov_b32 s{SRD_OUT+2}, {S*D*2}
    s_mov_b32 s{SRD_OUT+3}, 0x20000
    s_mov_b32 s{SRD_X}, s6
    s_mov_b32 s{SRD_X+1}, s7
    s_mov_b32 s{SRD_X+2}, {WS_USED}
    s_mov_b32 s{SRD_X+3}, 0x20000
    """)
    for t in range(2):
        for p in range(2):
            a(f"buffer_load_dwordx4 {vr(XIN+(t*2+p)*4,4)}, v{VXO}, {sr(SRD_IN,4)}, s{S_XO+t} offen offset:{p*64}")
    a("s_barrier")
    stamp(a, 1)
    interval(a, 0, first=True)
    for s in range(1, 6): interval(a, s)
    a(f"s_mov_b32 s{S_CNT}, 8")
    a(".p2align 6")
    a("L_fi_cloop:")
    for s in range(6, 12):
        if s == 11:
            a(f"s_sub_u32 s{S_CNT}, s{S_CNT}, 1")
            a(f"s_cmp_lg_u32 s{S_CNT}, 0")
        interval(a, s)
    a("s_cbranch_scc1 L_fi_cloop")
    for s in range(54, NST):
        ex = []
        if s > NST_FF:
            j0 = (s - NST_FF - 1) * 32 // 15
            j1 = (s - NST_FF) * 32 // 15
            for j in range(j0, j1): ex += silu(j)
        interval(a, s, extra=ex)
    for m in mfmas(1, ACS): a(m)
    stamp(a, 2)
    a("s_waitcnt vmcnt(0)")
    for t in range(2):
        for p in range(2):
            x = XIN + (t*2+p)*4
            a(f"v_permlane16_swap_b32 v{x}, v{x+2}")
            a(f"v_permlane16_swap_b32 v{x+1}, v{x+3}")
    a("s_nop 7")
    for t in range(2):
        for p in range(2):
            x = XIN + (t*2+p)*4
            for h in range(2):
                d, g = acc(ACS, t, 2*p+h), acc(ACF, t, 2*p+h)
                for q in range(2):
                    xv = x + 2*h + q
                    a(f"v_lshlrev_b32 v2, 16, v{xv}")
                    a(f"v_and_b32 v3, 0xffff0000, v{xv}")
                    a(f"v_fmac_f32 v2, v{d+2*q}, v{g+2*q}")
                    a(f"v_fmac_f32 v3, v{d+2*q+1}, v{g+2*q+1}")
                    a(f"v_cvt_pk_bf16_f32 v{xv}, v2, v3")
            a("s_nop 1")
            a(f"v_permlane16_swap_b32 v{x}, v{x+2}")
            a(f"v_permlane16_swap_b32 v{x+1}, v{x+3}")
            a("s_nop 1")
            a(f"buffer_store_dwordx4 {vr(x,4)}, v{VXO}, {sr(SRD_OUT,4)}, s{S_XO+t} offen offset:{p*64}")
    if PROF:
        a("s_waitcnt vmcnt(0)")
        stamp(a, 3)
        prof_store(a)
    a("L_fi_end:")
    a("s_endpgm")
    return a.text()
```

```python
from asmlib import *
from layout import *
import struct

NAME = "gemm1_kernel"
SLOT = 36864
LDS = 4 * SLOT
XREG = 20480
WF = 16
XF = 36
TA = 68
XA = 80
DV = 82
L16 = 86
ACC = 96
SRD_G = 12
SRD_WS = 32
SOFF = 36
SINC = 40
S_M0 = 44
S_CNT = 45
S_X8, S_CL, S_MT, S_W, S_CG = 46, 47, 48, 49, 50
S_T = 52
S_EP = 60

def acc(p, t): return ACC + (p*4 + t)*4
def wf(p): return WF + (p % 5)*4
def xf(b, t): return XF + b*16 + t*4

BLK_REG = [0, 1, 2, 2, 3, 3, 4, 4, 5, 5]
BLK_IMM = [0, 0, 1024, 2048, 1024, 2048, 1024, 2048, 1024, 2048]

def mfma(p, t, xb, vswap, czero=False):
    d = acc(p, t)
    c = "0" if czero else vr(d, 4)
    A, B = vr(wf(p), 4), vr(xf(xb, t), 4)
    if vswap and p < 2:
        A, B = B, A
    return f"v_mfma_f32_16x16x32_bf16 {vr(d,4)}, {A}, {B}, {c}"

def wread(p, slot):
    reg = TA + (slot >> 1)*6 + BLK_REG[p]
    off = (slot & 1)*SLOT + BLK_IMM[p]
    return [f"ds_read_b64_tr_b16 {vr(wf(p),2)}, v{reg} offset:{off}",
            f"ds_read_b64_tr_b16 {vr(wf(p)+2,2)}, v{reg} offset:{off+512}"]

def xread(xb, slot):
    reg = XA + (slot >> 1)
    return [f"ds_read_b128 {vr(xf(xb,t),4)}, v{reg} offset:{(slot&1)*SLOT + t*1024}" for t in range(4)]

def dma_ops(role, slot):
    if role == "W":
        so = [SOFF, SOFF+1, SOFF+1, SOFF+2, SOFF+2]
        dv = [DV, DV+1, DV+1, DV+2, DV+2]
        ops = []
        for g in range(5):
            grp = []
            if g == 0: grp += [f"s_add_u32 m0, s{S_M0}, {slot*SLOT}", "s_nop 0"]
            if g == 4: grp += [f"s_add_u32 m0, s{S_M0}, {slot*SLOT + 4096}", "s_nop 0"]
            imm = (g & 3)*1024
            grp.append(f"buffer_load_dwordx4 v{dv[g]}, {sr(SRD_G+4*g,4)}, s{so[g]} offen offset:{imm} lds")
            if g in (0, 2, 4):
                k = g >> 1
                grp.append(f"s_add_u32 s{SOFF+k}, s{SOFF+k}, s{SINC+k}")
            ops.append(grp)
        return ops
    ops = []
    for i in range(4):
        grp = []
        if i == 0: grp += [f"s_add_u32 m0, s{S_M0}, {slot*SLOT}", "s_nop 0"]
        grp.append(f"buffer_load_dwordx4 v{DV+i}, {sr(SRD_WS,4)}, s{SOFF} offen offset:{i*1024} lds")
        if i == 3: grp.append(f"s_add_u32 s{SOFF}, s{SOFF}, 1024")
        ops.append(grp)
    return ops

def emit(a, lst):
    for s in lst: a(s)

def interval(a, role, vswap, s, dma, first=False):
    slot = s & 3
    xb = s & 1
    seq = ([] if first else [(7, 1-xb), (8, 1-xb), (9, 1-xb)]) + [(p, xb) for p in range(7)]
    fills = {}
    def add(i, j, lst): fills.setdefault((i, j), []).extend(lst)
    if first:
        emit(a, xread(xb, slot) + wread(0, slot) + wread(1, slot) + wread(2, slot))
        base = 0
    else:
        xr = xread(xb, slot)
        add(0, 0, xr[0:2]); add(0, 1, xr[2:4]); add(0, 2, wread(0, slot))
        add(1, 1, wread(1, slot))
        add(2, 1, wread(2, slot))
        base = 3
    for p in range(5):
        add(base + p, 1, wread(p + 3, slot))
    add(base + 5, 0, wread(8, slot))
    add(base + 5, 1, wread(9, slot))
    if dma:
        ops = dma_ops(role, (s + 3) & 3)
        pos = [(base + 0, 3), (base + 1, 3), (base + 2, 3), (base + 3, 3), (base + 4, 3)]
        if not first:
            pos = [(1, 3), (2, 3), (3, 3), (4, 3), (5, 3)]
        for g, o in zip(pos, ops): add(g[0], g[1], o)
    for i, (p, b) in enumerate(seq):
        if p < 7:
            a("s_waitcnt lgkmcnt(4)" if p < 6 else "s_waitcnt lgkmcnt(6)")
        for t in range(4):
            a(mfma(p, t, b, vswap, czero=(first and p < 7)))
            emit(a, fills.get((i, t), []))

def tail(a, vswap):
    for p in (7, 8, 9):
        for t in range(4):
            a(mfma(p, t, 1, vswap))

def mainloop(a, role, vswap):
    n = 5 if role == "W" else 4
    tag = f"{role}{int(vswap)}"
    for s in range(3):
        for g in dma_ops(role, s): emit(a, g)
    common_setup(a)
    a(f"s_waitcnt vmcnt({2*n})")
    a("s_barrier")
    interval(a, role, vswap, 0, True, first=True)
    a(f"s_waitcnt vmcnt({2*n}) lgkmcnt(0)")
    a("s_barrier")
    a(f"s_mov_b32 s{S_CNT}, 7")
    stamp(a, 1)
    a(".p2align 6")
    a(f"L_g1_loop_{tag}:")
    for s in (1, 2, 3, 4):
        interval(a, role, vswap, s, True)
        if s == 4:
            a(f"s_sub_u32 s{S_CNT}, s{S_CNT}, 1")
            a(f"s_cmp_lg_u32 s{S_CNT}, 0")
        a(f"s_waitcnt vmcnt({2*n}) lgkmcnt(0)")
        a("s_barrier")
    a(f"s_cbranch_scc1 L_g1_loop_{tag}")
    interval(a, role, vswap, 29, False)
    a(f"s_waitcnt vmcnt({n}) lgkmcnt(0)")
    a("s_barrier")
    interval(a, role, vswap, 30, False)
    a(f"s_waitcnt vmcnt(0) lgkmcnt(0)")
    a("s_barrier")
    interval(a, role, vswap, 31, False)
    a(f"s_waitcnt lgkmcnt(0)")
    tail(a, vswap)
    a("s_branch L_g1_epi")

def f32hex(x):
    return "0x%08x" % struct.unpack("<I", struct.pack("<f", x))[0]

PROF = False
def stamp(a, i):
    if PROF:
        a(f"s_memtime s[{70+4*i}:{71+4*i}]")
        a(f"s_memrealtime s[{72+4*i}:{73+4*i}]")

def prof_store(a):
    if not PROF: return
    a(f"""
    s_waitcnt lgkmcnt(0)
    s_lshl_b32 s{S_T}, s2, 3
    s_add_u32 s{S_T}, s{S_T}, s{S_W}
    s_lshl_b32 s{S_T}, s{S_T}, 6
    s_add_u32 s{S_T}, s{S_T}, {PROF_OFF}
    s_mov_b32 s{SRD_WS+2}, 0x4000000
    """)
    for i in range(4):
        a(f"v_mov_b32 v{4+2*i}, s{70+4*i}")
        a(f"v_mov_b32 v{5+2*i}, s{72+4*i}")
    a(f"""
    v_mov_b32 v2, 0
    buffer_store_dwordx4 v[4:7], v2, {sr(SRD_WS,4)}, s{S_T} offen
    buffer_store_dwordx4 v[8:11], v2, {sr(SRD_WS,4)}, s{S_T} offen offset:16
    """)

def common_setup(a):
    a(f"""
    v_lshrrev_b32 v3, 4, v1
    v_bfe_u32 v4, v1, 2, 2
    v_and_b32 v5, 3, v1
    v_mul_u32_u24 v6, 5120, v3
    v_lshl_add_u32 v6, v4, 7, v6
    v_lshl_add_u32 v6, v5, 3, v6
    v_lshrrev_b32 v7, 1, v4
    v_lshlrev_b32 v7, 5, v7
    v_and_b32 v8, 1, v3
    v_lshl_or_b32 v7, v8, 6, v7
    s_lshl_b32 s{S_T}, s{S_CG}, 6
    v_xor_b32 v8, s{S_T}, v7
    v_add_u32 v{TA+0}, v6, v8
    v_xor_b32 v8, 32, v8
    v_add_u32 v{TA+1}, v6, v8
    s_cmp_eq_u32 s{S_CL}, 0
    """)
    lab = a.newlabel("g1_taB")
    done = a.newlabel("g1_ta_done")
    a(f"s_cbranch_scc1 {lab}")
    a(f"s_lshl_b32 s{S_T}, s{S_CG}, 11")
    a(f"v_add_u32 v9, s{S_T}, v6")
    for b in range(4):
        a(f"v_xor_b32 v8, {32*b}, v7")
        a(f"v_add_u32 v{TA+2+b}, v9, v8")
    a(f"s_branch {done}")
    a(f"{lab}:")
    a(f"""
    v_mov_b32 v{TA+2}, v{TA+0}
    v_mov_b32 v{TA+3}, v{TA+1}
    v_add_u32 v{TA+4}, 2048, v{TA+0}
    v_add_u32 v{TA+5}, 2048, v{TA+1}
    """)
    a(f"{done}:")
    for i in range(6):
        a(f"v_add_u32 v{TA+6+i}, {2*SLOT}, v{TA+i}")
    a(f"""
    s_and_b32 s{S_T}, s{S_W}, 3
    s_lshl_b32 s{S_T+1}, s{S_T}, 12
    s_add_u32 s{S_T+1}, s{S_T+1}, {XREG}
    v_add_u32 v{XA}, s{S_T+1}, v{L16}
    v_add_u32 v{XA+1}, {2*SLOT}, v{XA}
    """)
    for p in (7, 8, 9):
        for t in range(4):
            for j in range(4):
                a(f"v_mov_b32 v{acc(p,t)+j}, 0")

def gen():
    a = Asm()
    a(f"""
    s_cmp_ge_u32 s2, 256
    s_cbranch_scc1 L_g1_end
    """)
    stamp(a, 0)
    a(f"""
    s_load_dwordx2 s[4:5], s[0:1], {KA_WQKV}
    s_load_dwordx4 s[8:11], s[0:1], {KA_WG}
    s_load_dwordx2 s[6:7], s[0:1], {KA_WS}
    v_lshrrev_b32 v2, 6, v0
    v_and_b32 v1, 63, v0
    s_and_b32 s{S_X8}, s2, 7
    s_bfe_u32 s{S_CL}, s2, 0x20003
    s_lshr_b32 s{S_MT}, s2, 5
    v_readfirstlane_b32 s{S_W}, v2
    v_lshlrev_b32 v{L16}, 4, v1
    s_lshr_b32 s{S_CG}, s{S_W}, 2
    s_cmp_ge_u32 s{S_W}, 4
    s_cbranch_scc1 L_g1_roleX
    """)
    a(f"""
    v_and_b32 v4, 7, v1
    v_bfe_u32 v5, v1, 4, 1
    v_lshlrev_b32 v5, 1, v5
    v_xor_b32 v4, v4, v5
    s_and_b32 s{S_T}, s{S_W}, 1
    s_lshl_b32 s{S_T}, s{S_T}, 2
    v_xor_b32 v4, s{S_T}, v4
    v_lshlrev_b32 v4, 4, v4
    v_lshrrev_b32 v3, 3, v1
    s_lshl_b32 s{S_T}, s{S_W}, 3
    v_add_u32 v3, s{S_T}, v3
    v_mov_b32 v6, 6144
    v_mov_b32 v7, 7168
    v_mad_u32_u24 v{DV+0}, v3, v6, v4
    v_mad_u32_u24 v{DV+2}, v3, v7, v4
    s_mul_i32 s{S_M0}, s{S_W}, 5120
    s_mov_b32 s{SOFF+0}, 0
    s_mov_b32 s{SOFF+1}, 0
    s_mov_b32 s{SOFF+2}, 0
    s_mov_b32 s{SINC+0}, {6144*32}
    s_mov_b32 s{SINC+2}, {7168*32}
    s_lshl_b32 s{S_T}, s{S_X8}, 7
    s_mul_i32 s{S_T+1}, s{S_X8}, {7*128}
    s_cmp_eq_u32 s{S_CL}, 0
    s_cbranch_scc0 L_g1_typeA
    """)
    def srd(g, lo, hi, col, total):
        comp = (g & 3)*1024
        b = SRD_G + 4*g
        a(f"s_sub_u32 s{S_T+7}, {col}, {comp}")
        a(f"s_ashr_i32 s{S_T+6}, s{S_T+7}, 31")
        a(f"s_add_u32 s{b}, s{lo}, s{S_T+7}")
        a(f"s_addc_u32 s{b+1}, s{hi}, s{S_T+6}")
        a(f"s_sub_u32 s{b+2}, {total}, s{S_T+7}")
        a(f"s_mov_b32 s{b+3}, 0x20000")
    TQ, TG = 1024*6144, 1024*7168
    a(f"""
    v_mov_b32 v{DV+1}, v{DV+0}
    s_mov_b32 s{SINC+1}, {6144*32}
    s_add_u32 s{S_T+2}, s{S_T}, 4096
    s_add_u32 s{S_T+3}, s{S_T}, 2048
    s_waitcnt lgkmcnt(0)
    """)
    srd(0, 4, 5, f"s{S_T+2}", TQ)
    srd(1, 4, 5, f"s{S_T}", TQ)
    srd(2, 4, 5, f"s{S_T+3}", TQ)
    srd(3, 8, 9, f"s{S_T+1}", TG)
    srd(4, 10, 11, f"s{S_T+1}", TG)
    a("s_branch L_g1_roleWV")
    a("L_g1_typeA:")
    a(f"""
    v_mov_b32 v{DV+1}, v{DV+2}
    s_mov_b32 s{SINC+1}, {7168*32}
    s_sub_u32 s{S_T+4}, s{S_CL}, 1
    s_lshl_b32 s{S_T+2}, s{S_T+4}, 11
    s_add_u32 s{S_T+2}, s{S_T+2}, s{S_T}
    s_add_u32 s{S_T+2}, s{S_T+2}, 1024
    s_lshl_b32 s{S_T+3}, s{S_T+4}, 8
    s_add_u32 s{S_T+3}, s{S_T+3}, s{S_T+1}
    s_add_u32 s{S_T+3}, s{S_T+3}, 128
    s_add_u32 s{S_T+4}, s{S_T+3}, 128
    s_waitcnt lgkmcnt(0)
    """)
    srd(0, 4, 5, f"s{S_T+2}", TQ)
    srd(1, 8, 9, f"s{S_T+3}", TG)
    srd(2, 10, 11, f"s{S_T+3}", TG)
    srd(3, 8, 9, f"s{S_T+4}", TG)
    srd(4, 10, 11, f"s{S_T+4}", TG)
    a(f"""
    s_cmp_eq_u32 s{S_CL}, 3
    s_cbranch_scc1 L_g1_roleWV
    """)
    ws_srd = f"""
    s_mov_b32 s{SRD_WS}, s6
    s_mov_b32 s{SRD_WS+1}, s7
    s_mov_b32 s{SRD_WS+2}, {WS_USED}
    s_mov_b32 s{SRD_WS+3}, 0x20000
    """
    a(ws_srd)
    mainloop(a, "W", False)
    a("L_g1_roleWV:")
    a(ws_srd)
    mainloop(a, "W", True)
    a("L_g1_roleX:")
    a(f"""
    s_sub_u32 s{S_T}, s{S_W}, 4
    s_lshl_b32 s{S_M0}, s{S_T}, 12
    s_add_u32 s{S_M0}, s{S_M0}, {XREG}
    s_lshl_b32 s{S_T}, s{S_T}, 2
    s_lshl_b32 s{S_T+1}, s{S_MT}, 4
    s_add_u32 s{S_T}, s{S_T}, s{S_T+1}
    s_lshl_b32 s{SOFF}, s{S_T}, 15
    s_add_u32 s{SOFF}, s{SOFF}, {XN_OFF}
    v_mov_b32 v{DV}, v{L16}
    v_add_u32 v{DV+1}, {1*31744}, v{L16}
    v_add_u32 v{DV+2}, {2*31744}, v{L16}
    v_add_u32 v{DV+3}, {3*31744}, v{L16}
    s_waitcnt lgkmcnt(0)
    """)
    a(ws_srd)
    a(f"""
    s_cmp_eq_u32 s{S_CL}, 0
    s_cbranch_scc1 L_g1_roleXV
    s_cmp_eq_u32 s{S_CL}, 3
    s_cbranch_scc1 L_g1_roleXV
    """)
    mainloop(a, "X", False)
    a("L_g1_roleXV:")
    mainloop(a, "X", True)

    a("L_g1_epi:")
    stamp(a, 2)
    VQK, VV, VH = 2, 3, 4
    a(f"""
    s_and_b32 s{S_T}, s{S_W}, 3
    s_lshl_b32 s{S_T}, s{S_T}, 1
    s_lshl_b32 s{S_T+1}, s{S_MT}, 3
    s_add_u32 s{S_EP}, s{S_T}, s{S_T+1}
    s_lshl_b32 s{S_EP+1}, s{S_EP}, 11
    s_mul_i32 s{S_EP+2}, s{S_EP}, {2*112*1024}
    s_add_u32 s{S_EP+2}, s{S_EP+2}, {HF_OFF}
    s_mul_i32 s{S_EP+3}, s{S_X8}, 7
    s_lshl_b32 s{S_EP+4}, s{S_X8}, 1
    s_add_u32 s{S_EP+4}, s{S_EP+4}, s{S_CG}
    v_lshrrev_b32 v8, 4, v1
    v_and_b32 v9, 15, v1
    v_lshrrev_b32 v10, 1, v8
    v_and_b32 v11, 1, v8
    v_lshlrev_b32 v12, 4, v9
    v_lshl_add_u32 v12, v11, 9, v12
    v_lshl_add_u32 v{VQK}, v10, 10, v12
    v_lshl_add_u32 v{VV}, v10, 8, v12
    v_mov_b32 v{VH}, v{L16}
    v_add_u32 v{VH+1}, {1*114688}, v{L16}
    v_add_u32 v{VH+2}, {2*114688}, v{L16}
    v_add_u32 v{VH+3}, {3*114688}, v{L16}
    s_mov_b32 s{S_T+4}, {f32hex(QSCALE)}
    s_mov_b32 s{S_T+5}, s{S_T+4}
    s_nop 7
    """)
    def pack(pa, pb, t):
        da, db = acc(pa, t), acc(pb, t)
        a(f"v_cvt_pk_bf16_f32 v{da}, v{da}, v{da+1}")
        a(f"v_cvt_pk_bf16_f32 v{da+1}, v{da+2}, v{da+3}")
        a(f"v_cvt_pk_bf16_f32 v{da+2}, v{db}, v{db+1}")
        a(f"v_cvt_pk_bf16_f32 v{da+3}, v{db+2}, v{db+3}")
        return da
    def qk_store(pa, pb, scale, sreg):
        for t in range(4):
            if scale:
                for p in (pa, pb):
                    d = acc(p, t)
                    a(f"v_pk_mul_f32 {vr(d,2)}, {vr(d,2)}, {sr(S_T+4,2)}")
                    a(f"v_pk_mul_f32 {vr(d+2,2)}, {vr(d+2,2)}, {sr(S_T+4,2)}")
            d = pack(pa, pb, t)
            a(f"buffer_store_dwordx4 {vr(d,4)}, v{VQK}, {sr(SRD_WS,4)}, s{sreg} offen offset:{(t&1)*256 + (t>>1)*2048}")
    def v_store(pa, pb, sreg):
        for t in range(4):
            d = pack(pa, pb, t)
            a("s_nop 1")
            a(f"v_permlane32_swap_b32 v{d}, v{d+2}")
            a(f"v_permlane32_swap_b32 v{d+1}, v{d+3}")
            a("s_nop 1")
            a(f"buffer_store_dwordx4 {vr(d,4)}, v{VV}, {sr(SRD_WS,4)}, s{sreg} offen offset:{(t&1)*1024 + (t>>1)*2048}")
    def h_store(g0, sreg, imm):
        for t in range(4):
            for g in (g0, g0+2):
                dg, du = acc(g, t), acc(g+1, t)
                for j in range(4):
                    a(f"v_max_f32 v{dg+j}, 0, v{dg+j}")
                a(f"v_pk_mul_f32 {vr(dg,2)}, {vr(dg,2)}, {vr(du,2)}")
                a(f"v_pk_mul_f32 {vr(dg+2,2)}, {vr(dg+2,2)}, {vr(du+2,2)}")
            d = pack(g0, g0+2, t)
            a(f"buffer_store_dwordx4 {vr(d,4)}, v{VH+t}, {sr(SRD_WS,4)}, s{sreg} offen offset:{imm}")
    def head_dest(dst, base, head_add):
        a(f"s_add_u32 s{dst}, s{S_EP+4}, {head_add}")
        a(f"s_lshl_b32 s{dst}, s{dst}, 17")
        a(f"s_add_u32 s{dst}, s{dst}, s{S_EP+1}")
        a(f"s_add_u32 s{dst}, s{dst}, {base}")
    a(f"s_cmp_eq_u32 s{S_CL}, 0")
    a("s_cbranch_scc1 L_g1_eB")
    a(f"""
    s_sub_u32 s{S_T}, s{S_CL}, 1
    s_lshl_b32 s{S_T+1}, s{S_T}, 1
    s_add_u32 s{S_T+1}, s{S_T+1}, s{S_EP+3}
    s_add_u32 s{S_T+1}, s{S_T+1}, s{S_CG}
    s_add_u32 s{S_T+1}, s{S_T+1}, 1
    s_lshl_b32 s{S_T+1}, s{S_T+1}, 11
    s_add_u32 s{S_EP+5}, s{S_T+1}, s{S_EP+2}
    s_lshl_b32 s{S_T}, s{S_T}, 22
    s_add_u32 s{S_T}, s{S_T}, {QF_OFF}
    """)
    head_dest(S_EP+6, f"s{S_T}", 16)
    h_store(2, S_EP+5, 0)
    h_store(6, S_EP+5, 1024)
    a(f"s_cmp_eq_u32 s{S_CL}, 3")
    a("s_cbranch_scc1 L_g1_eAV")
    a(f"s_cmp_eq_u32 s{S_CL}, 1")
    a(f"s_cselect_b32 s{S_T+4}, s{S_T+4}, 1.0")
    a(f"s_mov_b32 s{S_T+5}, s{S_T+4}")
    qk_store(0, 1, True, S_EP+6)
    a("s_branch L_g1_fin")
    a("L_g1_eAV:")
    v_store(0, 1, S_EP+6)
    a("s_branch L_g1_fin")
    a("L_g1_eB:")
    a(f"""
    s_lshl_b32 s{S_T+1}, s{S_EP+3}, 1
    s_add_u32 s{S_T+1}, s{S_T+1}, s{S_CG}
    s_lshl_b32 s{S_T+1}, s{S_T+1}, 10
    s_add_u32 s{S_EP+5}, s{S_T+1}, s{S_EP+2}
    """)
    head_dest(S_EP+6, VF_OFF, 0)
    v_store(0, 1, S_EP+6)
    head_dest(S_EP+7, QF_OFF, 0)
    qk_store(2, 4, True, S_EP+7)
    head_dest(S_EP+6, KF_OFF, 0)
    qk_store(3, 5, False, S_EP+6)
    h_store(6, S_EP+5, 0)
    a("L_g1_fin:")
    if PROF:
        a("s_waitcnt vmcnt(0)")
        stamp(a, 3)
        prof_store(a)
    a("L_g1_end:")
    a("s_endpgm")
    return a.text()
```

```python
from asmlib import *
from layout import *

NAME = "ln_kernel"

def rsum8(a, v, t):
    a(f"""
    s_nop 1
    v_add_f32_dpp v{v}, v{v}, v{v} row_ror:8 row_mask:0xf bank_mask:0xf
    s_nop 0
    v_mov_b32 v{t}, v{v}
    s_nop 1
    v_permlane16_swap_b32 v{v}, v{t}
    s_nop 0
    v_add_f32 v{v}, v{v}, v{t}
    s_nop 0
    v_mov_b32 v{t}, v{v}
    s_nop 1
    v_permlane32_swap_b32 v{v}, v{t}
    s_nop 0
    v_add_f32 v{v}, v{v}, v{t}
    """)

def gen():
    a = Asm()
    X = 32
    R = 8
    a(f"""
    s_cmp_ge_u32 s2, 256
    s_cbranch_scc1 L_ln_end
    s_load_dwordx2 s[4:5], s[0:1], {KA_X}
    s_load_dwordx2 s[6:7], s[0:1], {KA_WS}
    v_and_b32 v1, 63, v0
    v_lshrrev_b32 v2, 6, v0
    v_and_b32 v3, 7, v1
    v_lshrrev_b32 v4, 3, v1
    v_lshlrev_b32 v5, 11, v3
    v_lshl_add_u32 v5, v2, 9, v5
    v_lshl_add_u32 v5, v4, 4, v5
    s_lshl_b32 s3, s2, 14
    s_waitcnt lgkmcnt(0)
    s_mov_b32 s8, s4
    s_mov_b32 s9, s5
    s_mov_b32 s10, {S*D*2}
    s_mov_b32 s11, 0x20000
    s_mov_b32 s12, s6
    s_mov_b32 s13, s7
    s_mov_b32 s14, {WS_USED}
    s_mov_b32 s15, 0x20000
    """)
    for i in range(4):
        a(f"buffer_load_dwordx4 v[{R+4*i}:{R+4*i+3}], v5, s[8:11], s3 offen offset:{128*i}")
    a(f"""
    v_lshrrev_b32 v6, 5, v1
    v_lshl_add_u32 v6, v2, 3, v6
    v_lshlrev_b32 v6, 10, v6
    v_and_b32 v7, 3, v4
    v_lshl_add_u32 v6, v7, 8, v6
    s_and_b32 s16, s2, 1
    s_lshl_b32 s16, s16, 3
    v_add_u32 v7, s16, v3
    v_lshl_add_u32 v6, v7, 4, v6
    s_lshr_b32 s17, s2, 1
    s_lshl_b32 s17, s17, 15
    s_add_u32 s17, s17, {XN_OFF}
    s_add_u32 s18, s17, 4096
    v_lshlrev_b32 v24, 2, v3
    v_lshl_add_u32 v25, v2, 5, v24
    s_mov_b32 s21, 0xffff0000
    """)
    for i in range(4):
        a(f"s_waitcnt vmcnt({3-i})")
        for j in range(4):
            a(f"v_lshlrev_b32 v{X+8*i+2*j}, 16, v{R+4*i+j}")
            a(f"v_and_b32 v{X+8*i+2*j+1}, s21, v{R+4*i+j}")
    for j in range(16):
        a(f"v_add_f32 v{R+j}, v{X+2*j}, v{X+2*j+1}")
    for step in (8, 4, 2, 1):
        for j in range(step):
            a(f"v_add_f32 v{R+j}, v{R+j}, v{R+j+step}")
    rsum8(a, R, 26)
    a(f"""
    ds_write_b32 v25, v{R}
    s_waitcnt lgkmcnt(0)
    s_barrier
    ds_read_b32 v26, v24
    ds_read_b32 v27, v24 offset:32
    ds_read_b32 v28, v24 offset:64
    ds_read_b32 v29, v24 offset:96
    s_waitcnt lgkmcnt(0)
    v_add_f32 v26, v26, v27
    v_add_f32 v28, v28, v29
    v_add_f32 v26, v26, v28
    v_mul_f32 v30, {1.0/1024}, v26
    """)
    for j in range(16):
        a(f"v_sub_f32 v{R+j}, v{X+2*j}, v30")
        a(f"v_sub_f32 v27, v{X+2*j+1}, v30")
        a(f"v_mul_f32 v{R+j}, v{R+j}, v{R+j}")
        a(f"v_fmac_f32 v{R+j}, v27, v27")
    for step in (8, 4, 2, 1):
        for j in range(step):
            a(f"v_add_f32 v{R+j}, v{R+j}, v{R+j+step}")
    rsum8(a, R, 26)
    a(f"""
    ds_write_b32 v25, v{R} offset:128
    s_waitcnt lgkmcnt(0)
    s_barrier
    ds_read_b32 v26, v24 offset:128
    ds_read_b32 v27, v24 offset:160
    ds_read_b32 v28, v24 offset:192
    ds_read_b32 v29, v24 offset:224
    s_waitcnt lgkmcnt(0)
    v_add_f32 v26, v26, v27
    v_add_f32 v28, v28, v29
    v_add_f32 v26, v26, v28
    v_mul_f32 v31, {1.0/1024}, v26
    v_cvt_pk_bf16_f32 v30, v30, v30
    v_cvt_pk_bf16_f32 v31, v31, v31
    v_and_b32 v30, s21, v30
    v_and_b32 v31, s21, v31
    v_add_f32 v31, 0x3727c5ac, v31
    v_cvt_pk_bf16_f32 v31, v31, v31
    v_and_b32 v31, s21, v31
    v_sqrt_f32 v31, v31
    s_nop 0
    v_cvt_pk_bf16_f32 v31, v31, v31
    v_and_b32 v31, s21, v31
    v_rcp_f32 v31, v31
    s_nop 0
    """)
    for j in range(16):
        a(f"v_sub_f32 v{X+2*j}, v{X+2*j}, v30")
        a(f"v_sub_f32 v{X+2*j+1}, v{X+2*j+1}, v30")
        a(f"v_cvt_pk_bf16_f32 v26, v{X+2*j}, v{X+2*j+1}")
        a(f"v_lshlrev_b32 v27, 16, v26")
        a(f"v_and_b32 v28, s21, v26")
        a(f"v_mul_f32 v27, v27, v31")
        a(f"v_mul_f32 v28, v28, v31")
        a(f"v_cvt_pk_bf16_f32 v{R+j}, v27, v28")
    for i in range(4):
        a(f"buffer_store_dwordx4 v[{R+4*i}:{R+4*i+3}], v6, s[12:15], s{17+(i>>1)} offen offset:{2048*(i&1)}")
    a("L_ln_end:")
    a("s_endpgm")
    return a.text()
```

```python
S = 2048; D = 1024; F = 3584; H = 32; DH = 32
XN_OFF = 0x0000000
QF_OFF = 0x0400000
KF_OFF = 0x0800000
VF_OFF = 0x0C00000
HF_OFF = 0x1000000
OF_OFF = 0x2000000
GF_OFF = 0x2400000
WS_USED = 0x2800000
PROF_OFF = 0x3000000
KA_X, KA_WQKV, KA_WO, KA_BX, KA_WG, KA_WU, KA_WD, KA_OUT, KA_DBG, KA_WS = [8*i for i in range(10)]
QSCALE = (32 ** -0.5) * 1.4426950408889634
```

```python
import sys, os
sys.path.insert(0, os.path.dirname(__file__))
from asmlib import *
from layout import *
import k_ln, k_gemm1, k_attn, k_final

HEADER = open(os.path.join(os.path.dirname(__file__), "..", "cdna_kernels",
    "recurrent_scan__softmax_full_mha__glu_gated_reglu__prompt.s.ref")).read().split("; Override launch")[0]

def build(kernels):
    out = HEADER
    for m, grid, block, lds, vgpr in kernels:
        out += f"; @launch kernel={m.NAME} grid=({grid},1,1) block=({block},1,1) lds={lds}\n"
    out += '.amdgcn_target "amdgcn-amd-amdhsa--gfx950"\n.text\n'
    for m, *_ in kernels:
        out += kernel_header(m.NAME) + m.gen()
    out += '.section .rodata,"a"\n'
    for m, grid, block, lds, vgpr in kernels:
        out += ".p2align 6\n" + kernel_desc(m.NAME, vgpr)
    return out

if __name__ == "__main__":
    opts = [x for x in sys.argv[1:] if x.startswith("--")]
    pos = [x for x in sys.argv[1:] if not x.startswith("--")]
    k_gemm1.PROF = "--prof" in opts
    k_attn.PROF = "--prof" in opts
    k_final.PROF = "--prof" in opts
    for o in opts:
        if o.startswith("--pad="): k_attn.PAD = int(o.split("=")[1])
        if o.startswith("--fexp="): k_final.EXP = o.split("=")[1]
        if o == "--nors": k_attn.NORS = True
        if o.startswith("--delta="): k_attn.DELTA = float(o.split("=")[1])
    ks = [(k_ln, 256, 256, 256, 64), (k_gemm1, 256, 512, k_gemm1.LDS, 256),
          (k_attn, 256, 512, k_attn.LDS, k_attn.NVGPR),
          (k_final, 256, 512, k_final.LDS, k_final.NVGPR)]
    txt = build(ks)
    path = pos[0] if pos else "k.s"
    os.makedirs(os.path.dirname(path), exist_ok=True)
    open(path, "w").write(txt)
    print("wrote", path, len(txt))
```

```python
from asmlib import *
from layout import *
import struct

NAME = "attn_kernel"
RING = 65536
FLAG = RING
MXCH = RING + 64
LXCH = MXCH + 4096
LDS = LXCH + 2048
DELTA = 108.0
LMAX = 2.0 ** 120

QA, QB = 8, 16
KF_, VF_ = 24, 32
SEL = 40
PA, PB = 44, 52
LA, LB = 60, 64
SA, SB = 68, 84
MA, MB = 100, 116
OA, OB = 132, 148
KP = 164
VADDR = 228
MXA, MXB = 229, 230
L16 = 231
VCD, VCO = 232, 233
CA, CB = 236, 240
NVGPR = 244

SRD_MY, SRD_WS = 8, 16
S_W, S_HEAD, S_QB, S_MODE = 20, 21, 22, 23
S_SOFF, S_M0, S_CNT, S_HF = 24, 25, 26, 27
S_T = 28
S_KB = 36
S_P = 37
S_SOFF0 = 38
SRD_CA, SRD_CB = 40, 44
S_SA, S_SB, S_DA, S_DB = 48, 49, 50, 51
S_N1, S_N2 = 52, 56
S_PWO, S_PWD = 60, 62
S_DO = 64
OOB = 0x7fff0000
COPY = True
CFLAGS = ""

def f32hex(x):
    return "0x%08x" % struct.unpack("<I", struct.pack("<f", x))[0]

PROF = False
PAD = 0
NORS = False
def stamp(a, i):
    if PROF:
        a(f"s_memtime s[{70+4*i}:{71+4*i}]")
        a(f"s_memrealtime s[{72+4*i}:{73+4*i}]")

def prof_store(a):
    if not PROF: return
    a(f"""
    s_waitcnt lgkmcnt(0)
    s_lshl_b32 s{S_T}, s2, 3
    s_add_u32 s{S_T}, s{S_T}, s{S_W}
    s_lshl_b32 s{S_T}, s{S_T}, 6
    s_add_u32 s{S_T}, s{S_T}, {PROF_OFF + 0x100000}
    s_mov_b32 s{SRD_WS+2}, 0x4000000
    """)
    for i in range(4):
        a(f"v_mov_b32 v{4+2*i}, s{70+4*i}")
        a(f"v_mov_b32 v{5+2*i}, s{72+4*i}")
    a(f"""
    v_mov_b32 v2, 0
    buffer_store_dwordx4 v[4:7], v2, {sr(SRD_WS,4)}, s{S_T} offen
    buffer_store_dwordx4 v[8:11], v2, {sr(SRD_WS,4)}, s{S_T} offen offset:16
    """)

def m32(d, A, B, C):
    return f"v_mfma_f32_32x32x16_bf16 {vr(d,16)}, {vr(A,4)}, {vr(B,4)}, {C}"
def m16(d, A, B):
    return f"v_mfma_f32_16x16x32_bf16 {vr(d,4)}, {vr(A,4)}, {vr(B,4)}, {vr(d,4)}"

def phase(a, x, kreads, vreads, extra, kwait, vwait):
    if x == 0: S, P, Sy, Py, Qy, My, Oy, Ly = SA, PA, SB, PB, QB, MB, OB, LB
    else:      S, P, Sy, Py, Qy, My, Oy, Ly = SB, PB, SA, PA, QA, MA, OA, LA
    E = [f"v_exp_f32 v{S+j}, v{S+j}" for j in range(16)]
    C = [f"v_cvt_pk_bf16_f32 v{P+k}, v{S+2*k}, v{S+2*k+1}" for k in range(8)]
    ex = list(extra)
    def X(n):
        out = ex[:n]; del ex[:n]; return out
    seq = []
    if kwait: seq.append(kwait)
    seq += [m32(Sy, KF_, Qy, vr(My,16)), E[0], E[1], E[2]] + X(2)
    if vwait: seq.append(vwait)
    seq += [m32(Oy, VF_, Py, vr(Oy,16)), E[3], C[0], E[4], E[5]] + X(2)
    seq += [m32(Sy, KF_+4, Qy+4, vr(Sy,16)), C[1], E[6]] + kreads + [E[7], E[8]] + X(2)
    seq += [m32(Oy, VF_+4, Py+4, vr(Oy,16)), C[2], C[3], E[9]] + vreads + [E[10]] + X(2)
    seq += [m16(Ly, SEL, Py), E[11], C[4], E[12]]
    seq += [m16(Ly, SEL, Py+4), E[13], C[5], E[14], E[15], C[6]] + X(99) + [C[7]]
    if PAD: seq.append(f"s_nop {PAD-1}")
    if NORS: seq = [s for s in seq if "16x16x32" not in s]
    for s in seq: a(s)

def max_tiles(a, kregs):
    bufa, bufb = [SA, MA], [SB, MB]
    def mx(dst, buf, lo):
        return [f"v_max3_f32 v{dst}, v{buf+2*k}, v{buf+2*k+1}, v{dst}" for k in range(lo, lo+4)]
    n = len(kregs)
    for i in range(n + 1):
        if i < n:
            k = kregs[i]
            mm = [m32(bufa[i&1], k, QA, "0"), m32(bufa[i&1], k+4, QA+4, vr(bufa[i&1],16)),
                  m32(bufb[i&1], k, QB, "0"), m32(bufb[i&1], k+4, QB+4, vr(bufb[i&1],16))]
        else:
            mm = ["s_nop 7", "s_nop 3", "s_nop 7", "s_nop 3"]
        pv = [[], [], [], []]
        if i > 0:
            j = (i-1) & 1
            pv = [mx(MXA, bufa[j], 0), mx(MXA, bufa[j], 4), mx(MXB, bufb[j], 0), mx(MXB, bufb[j], 4)]
        for m, f in zip(mm, pv):
            a(m)
            for s in f: a(s)

def half_max(a):
    for mxr in (MXA, MXB):
        a(f"""
        v_mov_b32 v2, v{mxr}
        s_nop 1
        v_permlane32_swap_b32 v{mxr}, v2
        s_nop 1
        v_max_f32 v{mxr}, v{mxr}, v2
        """)

def set_negm(a, delta):
    for mxr, M in ((MXA, MA), (MXB, MB)):
        a(f"v_sub_f32 v2, {f32hex(-delta) if delta else 0}, v{mxr}")
        for j in range(16):
            a(f"v_mov_b32 v{M+j}, v2")

def dma():
    return [f"buffer_load_dwordx4 v{L16}, {sr(SRD_MY,4)}, s{S_SOFF} offen lds",
            f"buffer_load_dwordx4 v{L16}, {sr(SRD_MY,4)}, s{S_SOFF} offen offset:1024 lds",
            f"s_add_u32 s{S_SOFF}, s{S_SOFF}, 4096"]

def copy_ops(j, peeled):
    if not COPY: return []
    ld = lambda r, srd, so: f"buffer_load_dwordx4 {vr(r,4)}, v{L16}, {sr(srd,4)}, s{so} offen"
    st = lambda r, v, so: f"buffer_store_dwordx4 {vr(r,4)}, v{v}, {sr(SRD_WS,4)}, s{so} offen{CFLAGS}"
    if peeled:
        return ["s_waitcnt vmcnt(8)", st(CA, VCO, S_DO)] if j == 12 else []
    k = j & 3
    if k == 0: return ["s_waitcnt vmcnt(8)", st(CA, VCD, S_DA)]
    if k == 1: return [ld(CA, SRD_CA, S_SA)]
    if k == 2: return ["s_waitcnt vmcnt(8)", st(CB, VCD, S_DB)]
    r = [ld(CB, SRD_CB, S_SB)]
    for i in range(4): r.append(f"s_mov_b32 s{S_SA+i}, s{S_N1+i}")
    for i in range(4): r.append(f"s_mov_b32 s{S_N1+i}, s{S_N2+i}")
    r += [f"s_cmp_eq_u32 s{S_CNT}, 2",
          f"s_cselect_b32 s{SRD_CA}, s{S_PWO}, s{SRD_CA}",
          f"s_cselect_b32 s{SRD_CA+1}, s{S_PWO+1}, s{SRD_CA+1}",
          f"s_cselect_b32 s{SRD_CA+2}, {D*D*2}, s{SRD_CA+2}"]
    return r

def copy_setup(a):
    if not COPY: return
    T = S_T
    a(f"""
    v_lshrrev_b32 v3, 3, v1
    v_and_b32 v4, 7, v1
    v_mul_u32_u24 v3, {WT_TILE}, v3
    v_lshl_add_u32 v{VCD}, v4, 4, v3
    v_lshrrev_b32 v3, 4, v1
    v_bfe_u32 v4, v1, 2, 1
    v_lshl_add_u32 v3, v3, 1, v4
    v_mul_u32_u24 v3, {WT_TILE}, v3
    v_bfe_u32 v4, v1, 3, 1
    v_and_b32 v5, 3, v1
    v_lshl_add_u32 v4, v4, 2, v5
    v_lshl_add_u32 v{VCO}, v4, 4, v3
    s_lshr_b32 s{T}, s{S_W}, 1
    s_and_b32 s{T+1}, s{S_W}, 1
    s_mul_i32 s{T+2}, s2, 14
    s_add_u32 s{T+2}, s{T+2}, s{T}
    s_lshl_b32 s{T+3}, s2, 2
    s_add_u32 s{T+3}, s{T+3}, s{T}
    s_lshl_b32 s{T+4}, s{T+1}, 10
    s_mul_i32 s{T+5}, s{T+1}, {8*WT_TILE}
    s_add_u32 s{T+5}, s{T+5}, {WT_OFF}
    s_lshl_b32 s{S_SA}, s{T+2}, 11
    s_add_u32 s{S_SA}, s{S_SA}, s{T+4}
    s_add_u32 s{S_SB}, s{S_SA}, {4*2048}
    s_mov_b32 s{S_DA}, {OOB}
    s_mov_b32 s{S_DB}, {OOB}
    s_lshl_b32 s{T+6}, s{T+2}, 7
    s_add_u32 s{T+6}, s{T+6}, s{T+5}
    s_cmp_ge_u32 s{S_W}, 4
    s_cselect_b32 s{T+7}, {OOB}, 0
    s_add_u32 s{S_N1}, s{S_SA}, {8*2048}
    s_add_u32 s{S_N1+1}, s{S_SA}, {12*2048}
    s_or_b32 s{S_N1+1}, s{S_N1+1}, s{T+7}
    s_mov_b32 s{S_N1+2}, s{T+6}
    s_add_u32 s{S_N1+3}, s{T+6}, {4*128}
    s_lshl_b32 s{S_N2}, s{T+3}, 11
    s_add_u32 s{S_N2}, s{S_N2}, s{T+4}
    s_mov_b32 s{S_N2+1}, {OOB}
    s_add_u32 s{S_N2+2}, s{T+6}, {8*128}
    s_add_u32 s{S_N2+3}, s{T+6}, {12*128}
    s_or_b32 s{S_N2+3}, s{S_N2+3}, s{T+7}
    s_add_u32 s{T+3}, s{T+3}, {F}
    s_lshl_b32 s{S_DO}, s{T+3}, 7
    s_add_u32 s{S_DO}, s{S_DO}, s{T+5}
    s_mov_b32 s{SRD_CA}, s{S_PWD}
    s_mov_b32 s{SRD_CA+1}, s{S_PWD+1}
    s_mov_b32 s{SRD_CA+2}, {F*D*2}
    s_mov_b32 s{SRD_CA+3}, 0x20000
    s_mov_b32 s{SRD_CB}, s{S_PWD}
    s_mov_b32 s{SRD_CB+1}, s{S_PWD+1}
    s_mov_b32 s{SRD_CB+2}, {F*D*2}
    s_mov_b32 s{SRD_CB+3}, 0x20000
    v_mov_b32 v{CB}, -1
    v_mov_b32 v{CB+1}, -1
    v_mov_b32 v{CB+2}, -1
    v_mov_b32 v{CB+3}, -1
    s_lshl_b32 s{T}, s2, 14
    s_lshl_b32 s{T+1}, s{S_W}, 11
    s_add_u32 s{T}, s{T}, s{T+1}
    s_add_u32 s{T}, s{T}, {PX_OFF}
    buffer_store_dwordx4 {vr(CB,4)}, v{L16}, {sr(SRD_WS,4)}, s{T} offen sc0 sc1
    buffer_store_dwordx4 {vr(CB,4)}, v{L16}, {sr(SRD_WS,4)}, s{T} offen offset:1024 sc0 sc1
    """)

def stage(a, j, do_dma, vm, last_in_loop=False, peeled=False):
    slot = j & 3
    a(f"s_waitcnt vmcnt({vm})")
    a("s_barrier")
    D = dma()
    for u in range(2):
        base = slot*16384 + u*4096
        kr = [f"ds_read_b128 {vr(KF_+4*f,4)}, v{VADDR} offset:{base+f*1024}" for f in range(2)]
        vrd = [f"ds_read_b128 {vr(VF_+4*f,4)}, v{VADDR} offset:{base+2048+f*1024}" for f in range(2)]
        ex1, ex2 = [], []
        if u == 0 and do_dma:
            ex1 = [f"s_add_u32 m0, s{S_M0}, {((j+3)&3)*16384}", "s_nop 0", D[0]]
            ex2 = [D[1], D[2]]
        if u == 1: ex1 = copy_ops(j, peeled)
        if u == 1 and last_in_loop:
            ex2 = [f"s_sub_u32 s{S_CNT}, s{S_CNT}, 1", f"s_cmp_lg_u32 s{S_CNT}, 0"]
        phase(a, 0, kr, vrd, ex1, None, None)
        phase(a, 1, [], [], ex2, "s_waitcnt lgkmcnt(2)", "s_waitcnt lgkmcnt(0)")

def gen():
    a = Asm()
    a(f"""
    s_cmp_ge_u32 s2, 256
    s_cbranch_scc1 L_at_end
    """)
    stamp(a, 0)
    a(f"""
    s_load_dwordx2 s[4:5], s[0:1], {KA_WS}
    s_load_dwordx2 s[{S_PWO}:{S_PWO+1}], s[0:1], {KA_WO}
    s_load_dwordx2 s[{S_PWD}:{S_PWD+1}], s[0:1], {KA_WD}
    v_lshrrev_b32 v2, 6, v0
    v_and_b32 v1, 63, v0
    s_and_b32 s{S_T}, s2, 7
    s_bfe_u32 s{S_T+1}, s2, 0x20003
    s_lshl_b32 s{S_HEAD}, s{S_T}, 2
    s_add_u32 s{S_HEAD}, s{S_HEAD}, s{S_T+1}
    s_lshr_b32 s{S_QB}, s2, 5
    v_readfirstlane_b32 s{S_W}, v2
    v_lshlrev_b32 v{L16}, 4, v1
    s_lshl_b32 s{S_KB}, s{S_HEAD}, 17
    s_mov_b32 s{S_MODE}, 0
    s_and_b32 s{S_P}, s{S_W}, 3
    s_lshr_b32 s{S_HF}, s{S_W}, 2
    s_lshl_b32 s{S_T}, s{S_QB}, 3
    s_lshl_b32 s{S_T+1}, s{S_P}, 1
    s_add_u32 s{S_T}, s{S_T}, s{S_T+1}
    s_lshl_b32 s{S_T+2}, s{S_T}, 11
    s_add_u32 s{S_T+2}, s{S_T+2}, s{S_KB}
    s_add_u32 s{S_T+2}, s{S_T+2}, {QF_OFF}
    s_lshl_b32 s{S_T+5}, s{S_HF}, 16
    s_add_u32 s{S_T+5}, s{S_T+5}, s{S_KB}
    s_and_b32 s{S_T+6}, s{S_P}, 1
    s_cmp_eq_u32 s{S_T+6}, 0
    s_cselect_b32 s{S_T+3}, 0, {VF_OFF - KF_OFF - 2048}
    s_cselect_b32 s{S_T+4}, s{S_HF}, 0
    s_add_u32 s{S_T+3}, s{S_T+3}, {KF_OFF + 2048}
    s_add_u32 s{S_T+3}, s{S_T+3}, s{S_T+5}
    s_lshl_b32 s{S_T+4}, s{S_T+4}, 11
    s_sub_u32 s{S_T+4}, 65536, s{S_T+4}
    s_lshr_b32 s{S_T}, s{S_P}, 1
    s_lshl_b32 s{S_SOFF0}, s{S_T}, 11
    s_lshl_b32 s{S_M0}, s{S_T}, 12
    s_lshl_b32 s{S_T+6}, s{S_T+6}, 11
    s_add_u32 s{S_M0}, s{S_M0}, s{S_T+6}
    s_lshl_b32 s{S_T}, s{S_HF}, 13
    s_add_u32 s{S_M0}, s{S_M0}, s{S_T}
    v_add_u32 v{VADDR}, s{S_T}, v{L16}
    s_add_u32 s{S_KB}, s{S_T+5}, {KF_OFF}
    s_waitcnt lgkmcnt(0)
    s_mov_b32 s{SRD_WS}, s4
    s_mov_b32 s{SRD_WS+1}, s5
    s_mov_b32 s{SRD_WS+2}, {WS_USED}
    s_mov_b32 s{SRD_WS+3}, 0x20000
    s_add_u32 s{SRD_MY}, s4, s{S_T+3}
    s_addc_u32 s{SRD_MY+1}, s5, 0
    s_mov_b32 s{SRD_MY+2}, s{S_T+4}
    s_mov_b32 s{SRD_MY+3}, 0x20000
    """)
    for t in range(2):
        for f in range(2):
            a(f"buffer_load_dwordx4 {vr(QA+8*t+4*f,4)}, v{L16}, {sr(SRD_WS,4)}, s{S_T+2} offen offset:{t*2048+f*1024}")
    a("L_at_restart:")
    a(f"s_mov_b32 s{S_SOFF}, s{S_SOFF0}")
    D = dma()
    for st in range(2):
        a(f"s_add_u32 m0, s{S_M0}, {st*16384}")
        a("s_nop 0")
        for d in D: a(d)
    for f in range(2):
        a(f"buffer_load_dwordx4 {vr(KF_+4*f,4)}, v{L16}, {sr(SRD_WS,4)}, s{S_KB} offen offset:{f*1024}")
    a(f"s_add_u32 m0, s{S_M0}, {2*16384}")
    a("s_nop 0")
    for d in D: a(d)
    copy_setup(a)
    c1 = 2 if COPY else 0
    a(f"""
    v_mov_b32 v2, 0
    v_mov_b32 v3, {FLAG}
    ds_write_b32 v3, v2
    v_bfe_u32 v4, v1, 4, 1
    v_bfe_u32 v5, v1, 2, 1
    v_cmp_eq_u32 vcc, v4, v5
    v_mov_b32 v6, 0x3f803f80
    v_cndmask_b32 v{SEL}, 0, v6, vcc
    """)
    for j in range(1, 4): a(f"v_mov_b32 v{SEL+j}, v{SEL}")
    for r, n in ((VF_, 8), (PB, 8), (LA, 4), (LB, 4), (OA, 16), (OB, 16)):
        for j in range(n): a(f"v_mov_b32 v{r+j}, 0")
    a(f"""
    s_waitcnt vmcnt({4+c1}) lgkmcnt(0)
    s_barrier
    s_cmp_eq_u32 s{S_MODE}, 0
    s_cbranch_scc0 L_at_havem
    """)
    for i in range(4):
        for f in range(2):
            a(f"ds_read_b128 {vr(KP+8*i+4*f,4)}, v{VADDR} offset:{(i>>1)*16384 + (i&1)*4096 + f*1024}")
    a(f"v_mov_b32 v{MXA}, 0xff800000")
    a(f"v_mov_b32 v{MXB}, 0xff800000")
    a("s_waitcnt lgkmcnt(0)")
    max_tiles(a, [KP+8*i for i in range(4)])
    half_max(a)
    a(f"""
    v_lshlrev_b32 v3, 2, v1
    s_lshl_b32 s{S_T}, s{S_W}, 9
    s_xor_b32 s{S_T+1}, s{S_T}, 2048
    s_add_u32 s{S_T}, s{S_T}, {MXCH}
    s_add_u32 s{S_T+1}, s{S_T+1}, {MXCH}
    v_add_u32 v4, s{S_T}, v3
    v_add_u32 v5, s{S_T+1}, v3
    ds_write_b32 v4, v{MXA}
    ds_write_b32 v4, v{MXB} offset:256
    s_waitcnt lgkmcnt(0)
    s_barrier
    ds_read_b32 v6, v5
    ds_read_b32 v7, v5 offset:256
    s_waitcnt lgkmcnt(0)
    v_max_f32 v{MXA}, v{MXA}, v6
    v_max_f32 v{MXB}, v{MXB}, v7
    """)
    set_negm(a, DELTA)
    a("L_at_havem:")
    a(f"s_waitcnt vmcnt({2+c1})")
    a(m32(SA, KF_, QA, vr(MA,16)))
    a(m32(SA, KF_+4, QA+4, vr(SA,16)))
    a(f"s_mov_b32 s{S_CNT}, 3")
    a("s_nop 7")
    a("s_nop 3")
    stamp(a, 1)
    a(".p2align 6")
    a("L_at_loop:")
    for j in range(4):
        stage(a, j, True, 7 if COPY else 4, last_in_loop=(j == 3))
    a("s_cbranch_scc1 L_at_loop")
    stage(a, 12, True, 7 if COPY else 4, peeled=True)
    stage(a, 13, False, 7 if COPY else 4, peeled=True)
    stage(a, 14, False, 4 if COPY else 2, peeled=True)
    stage(a, 15, False, 1 if COPY else 0, peeled=True)
    stamp(a, 2)
    a(m32(OB, VF_, PB, vr(OB,16)))
    a(m16(LB, SEL, PB))
    a(m32(OB, VF_+4, PB+4, vr(OB,16)))
    a(m16(LB, SEL, PB+4))
    a(f"""
    s_lshl_b32 s{S_T}, s{S_W}, 12
    s_xor_b32 s{S_T+1}, s{S_T}, 16384
    v_add_u32 v4, s{S_T}, v{L16}
    v_add_u32 v5, s{S_T+1}, v{L16}
    v_lshlrev_b32 v3, 2, v1
    s_lshl_b32 s{S_T}, s{S_W}, 8
    s_xor_b32 s{S_T+1}, s{S_T}, 1024
    s_add_u32 s{S_T}, s{S_T}, {LXCH}
    s_add_u32 s{S_T+1}, s{S_T+1}, {LXCH}
    v_add_u32 v6, s{S_T}, v3
    v_add_u32 v7, s{S_T+1}, v3
    v_and_b32 v2, 15, v1
    v_lshlrev_b32 v2, 4, v2
    v_lshrrev_b32 v3, 5, v1
    v_lshl_add_u32 v2, v3, 8, v2
    v_bfe_u32 v3, v1, 4, 1
    v_lshl_add_u32 v2, v3, 15, v2
    s_lshl_b32 s{S_T}, s{S_QB}, 3
    s_lshl_b32 s{S_T+1}, s{S_P}, 1
    s_add_u32 s{S_T}, s{S_T}, s{S_T+1}
    s_add_u32 s{S_T}, s{S_T}, s{S_HF}
    s_lshl_b32 s{S_T}, s{S_T}, 16
    s_lshl_b32 s{S_T+1}, s{S_HEAD}, 10
    s_add_u32 s{S_T}, s{S_T}, s{S_T+1}
    s_add_u32 s{S_T}, s{S_T}, {OF_OFF}
    s_mov_b32 s{S_T+2}, {f32hex(LMAX)}
    s_cmp_eq_u32 s{S_HF}, 0
    s_cbranch_scc0 L_at_x1
    """)
    def xch(send_o, send_l, keep_o, keep_l):
        for k in range(4):
            a(f"ds_write_b128 v4, {vr(send_o+4*k,4)} offset:{k*1024}")
        a(f"ds_write_b32 v6, v{send_l}")
        a("s_waitcnt lgkmcnt(0)")
        a("s_barrier")
        for k in range(4):
            a(f"ds_read_b128 {vr(SA+4*k,4)}, v5 offset:{k*1024}")
        a(f"ds_read_b32 v{KP}, v7")
        a("s_waitcnt lgkmcnt(0)")
        a(f"v_add_f32 v{KP}, v{KP}, v{keep_l}")
        a(f"v_rcp_f32 v{KP+2}, v{KP}")
        a(f"v_cmp_nle_f32 vcc, v{KP}, s{S_T+2}")
        for j in range(16):
            a(f"v_add_f32 v{SA+j}, v{SA+j}, v{keep_o+j}")
        a("s_branch L_at_xdone" if keep_o == OA else "")
    a("s_nop 7")
    xch(OB, LB, OA, LA)
    a("L_at_x1:")
    xch(OA, LA, OB, LB)
    a("L_at_xdone:")
    for k in range(8):
        a(f"v_pk_mul_f32 {vr(SA+2*k,2)}, {vr(SA+2*k,2)}, {vr(KP+2,2)} op_sel_hi:[1,0]")
    order = [0, 1, 4, 5, 2, 3, 6, 7]
    for i, k in enumerate(order):
        a(f"v_cvt_pk_bf16_f32 v{SB+i}, v{SA+2*k}, v{SA+2*k+1}")
    a(f"buffer_store_dwordx4 {vr(SB,4)}, v2, {sr(SRD_WS,4)}, s{S_T} offen")
    a(f"buffer_store_dwordx4 {vr(SB+4,4)}, v2, {sr(SRD_WS,4)}, s{S_T} offen offset:512")
    a(f"""
    s_cmp_eq_u32 s{S_MODE}, 0
    s_cbranch_scc0 L_at_fin
    s_cmp_eq_u64 vcc, 0
    s_cbranch_scc1 L_at_noflag
    v_mov_b32 v4, 1
    v_mov_b32 v3, {FLAG}
    ds_write_b32 v3, v4
L_at_noflag:
    s_waitcnt lgkmcnt(0)
    s_barrier
    v_mov_b32 v3, {FLAG}
    ds_read_b32 v4, v3
    s_waitcnt lgkmcnt(0)
    v_readfirstlane_b32 s{S_T}, v4
    s_cmp_eq_u32 s{S_T}, 0
    s_cbranch_scc1 L_at_fin
    s_mov_b32 s{S_MODE}, 1
    v_mov_b32 v{MXA}, 0xff800000
    v_mov_b32 v{MXB}, 0xff800000
    s_lshl_b32 s{S_T}, s{S_HEAD}, 17
    s_add_u32 s{S_T}, s{S_T}, {KF_OFF}
    s_mov_b32 s{S_CNT}, 8
L_at_fb:
    """)
    for i in range(8):
        if i and i % 2 == 0: a(f"s_add_u32 s{S_T}, s{S_T}, 4096")
        for f in range(2):
            a(f"buffer_load_dwordx4 {vr(KP+8*i+4*f,4)}, v{L16}, {sr(SRD_WS,4)}, s{S_T} offen offset:{(i&1)*2048+f*1024}")
    a(f"s_add_u32 s{S_T}, s{S_T}, 4096")
    a("s_waitcnt vmcnt(0)")
    max_tiles(a, [KP+8*i for i in range(8)])
    a(f"""
    s_sub_u32 s{S_CNT}, s{S_CNT}, 1
    s_cmp_lg_u32 s{S_CNT}, 0
    s_cbranch_scc1 L_at_fb
    """)
    half_max(a)
    set_negm(a, 0)
    a("s_waitcnt vmcnt(0)")
    a("s_barrier")
    a("s_branch L_at_restart")
    a("L_at_fin:")
    if PROF:
        a("s_waitcnt vmcnt(0)")
        stamp(a, 3)
        prof_store(a)
    a("L_at_end:")
    a("s_endpgm")
    return a.text()
```

```python
from asmlib import *
from layout import *
import struct

NAME = "final_kernel"
NS = 5
SLOT = 32768
XO = 16384
LDS = NS * SLOT
NFF, NSS = 28, 16
NST = NFF + NSS
TA, TS, XA = 10, 22, 28
VX0, VX1, VWA, L16, VXO, VCHK = 31, 32, 33, 34, 35, 36
VTL = 216
VX2 = 35
WB = (40, 56)
XB = (72, 88)
ACF, ACS, XIN = 104, 168, 200
NVGPR = 220
SRD_X, SRD_IN, SRD_OUT = 12, 16, 20
S_W, S_MT, S_NP, S_HF, S_CNT = 24, 25, 26, 27, 28
S_SW, S_SX, S_M0W, S_M0X = 30, 32, 34, 35
S_OX, S_SW2, S_M0W2 = 36, 37, 38
S_XO = 40
S_PS, S_PL = 44, 45
S_ONE, S_NL2E = 46, 48
S_MASK = 50
S_T = 52
S_POLL = 60
POLL_MAX = 1 << 16

def f32hex(x):
    return "0x%08x" % struct.unpack("<I", struct.pack("<f", x))[0]

PROF = False
EXP = ""
H_STORE = [0, 0, 1, 1]
H_LOAD = [11, 11, 11, 11]
H_CHECK = 16
H_SILU = 16
H_SEND = 31
STFL = " sc0 sc1"
LDFL = " sc1"

def stamp(a, i):
    if PROF:
        a(f"s_memtime s[{70+4*i}:{71+4*i}]")
        a(f"s_memrealtime s[{72+4*i}:{73+4*i}]")
def xstamp(i):
    return [f"s_memtime s[{86+2*i}:{87+2*i}]"] if PROF else []
def prof_store(a):
    if not PROF: return
    a(f"""
    s_waitcnt lgkmcnt(0)
    s_lshl_b32 s{S_T}, s2, 3
    s_add_u32 s{S_T}, s{S_T}, s{S_W}
    s_lshl_b32 s{S_T}, s{S_T}, 6
    s_add_u32 s{S_T}, s{S_T}, {PROF_OFF + 0x200000}
    s_mov_b32 s{SRD_X+2}, 0x4000000
    """)
    for i in range(4):
        a(f"v_mov_b32 v{4+2*i}, s{70+4*i}")
        a(f"v_mov_b32 v{5+2*i}, s{72+4*i}")
    for i in range(4):
        a(f"v_mov_b32 v{12+i}, s{86+2*i}")
    a(f"""
    v_mov_b32 v16, s{S_POLL}
    v_mov_b32 v17, 0
    v_mov_b32 v2, 0
    buffer_store_dwordx4 v[4:7], v2, {sr(SRD_X,4)}, s{S_T} offen
    buffer_store_dwordx4 v[8:11], v2, {sr(SRD_X,4)}, s{S_T} offen offset:16
    buffer_store_dwordx4 v[12:15], v2, {sr(SRD_X,4)}, s{S_T} offen offset:32
    buffer_store_dwordx2 v[16:17], v2, {sr(SRD_X,4)}, s{S_T} offen offset:48
    """)

def acf(t, b): return ACF + (t*4 + b)*4
def acs(t, b): return ACS + (t*2 + b)*4

def mfmas(stage, k):
    wb, xb = WB[k], XB[k]
    if stage < NFF:
        z = stage == 0 and k == 0
        return [f"v_mfma_f32_16x16x32_bf16 {vr(acf(t,b),4)}, {vr(wb+4*b,4)}, {vr(xb+4*t,4)}, "
                + ("0" if z else vr(acf(t,b),4)) for b in (2, 3, 0, 1) for t in range(4)]
    z = stage == NFF and k == 0
    return [f"v_mfma_f32_16x16x32_bf16 {vr(acs(t,b),4)}, {vr(wb+4*b,4)}, {vr(xb+4*t,4)}, "
            + ("0" if z else vr(acs(t,b),4)) for b in range(2) for t in range(4)]

def reads(stage, k):
    wb, xb = WB[k], XB[k]
    slot = stage % NS
    st, lo = slot >> 1, (slot & 1)*SLOT
    r = [f"ds_read_b128 {vr(xb+4*t,4)}, v{XA+st} offset:{lo + (2*t+k)*1024}" for t in range(4)]
    if stage < NFF:
        r += [f"ds_read_b64_tr_b16 {vr(wb+4*b+2*x,2)}, v{TA+4*st+b} offset:{lo + k*4096 + x*2048}"
              for b in (2, 3, 0, 1) for x in range(2)]
    else:
        r += [f"ds_read_b64_tr_b16 {vr(wb+4*b+2*x,2)}, v{TS+2*st+b} offset:{lo + k*4096 + x*2048}"
              for b in range(2) for x in range(2)]
    if "nords" in EXP: r = ["s_nop 0"] * len(r)
    return r

def half(a, m, r, extra=()):
    r = list(r); ex = list(extra)
    n = len(m)
    nslots = (len(r) + 1) // 2
    per = -(-len(ex) // max(1, n - nslots)) if ex else 0
    for i in range(n):
        a(m[i])
        if r:
            a(r.pop(0))
            if r: a(r.pop(0))
        elif ex:
            for x in ex[:per]: a(x)
            del ex[:per]
    for x in ex: a(x)
    a("s_waitcnt lgkmcnt(0)")

def silu_block(t, b):
    d, r, T = acf(t, b), acf(t, 3) + 2*b, acf(t, 2)
    one, c = sr(S_ONE, 2), sr(S_NL2E, 2)
    o = []
    for h in range(2):
        o += [f"v_lshlrev_b32 v{T+2*h}, 16, v{r+h}", f"v_and_b32 v{T+2*h+1}, s{S_MASK}, v{r+h}"]
    o += [f"v_pk_add_f32 {vr(d+2*h,2)}, {vr(d+2*h,2)}, {vr(T+2*h,2)}" for h in range(2)]
    o += [f"v_pk_mul_f32 {vr(T+2*h,2)}, {vr(d+2*h,2)}, {c}" for h in range(2)]
    o += [f"v_exp_f32 v{T+j}, v{T+j}" for j in range(4)]
    o += [f"v_pk_add_f32 {vr(T+2*h,2)}, {vr(T+2*h,2)}, {one}" for h in range(2)]
    o += [f"v_rcp_f32 v{T+j}, v{T+j}" for j in range(4)]
    o += [f"v_pk_mul_f32 {vr(d+2*h,2)}, {vr(d+2*h,2)}, {vr(T+2*h,2)}" for h in range(2)]
    return o

def pack_store(t):
    p, q = acf(t, 2), acf(t, 3)
    return [f"v_cvt_pk_bf16_f32 v{p}, v{p}, v{p+1}", f"v_cvt_pk_bf16_f32 v{p+1}, v{p+2}, v{p+3}",
            f"v_cvt_pk_bf16_f32 v{p+2}, v{q}, v{q+1}", f"v_cvt_pk_bf16_f32 v{p+3}, v{q+2}, v{q+3}",
            f"buffer_store_dwordx4 {vr(p,4)}, v{L16}, {sr(SRD_X,4)}, s{S_PS} offen offset:{t*1024}" + STFL]

def recv(t, fl):
    return f"buffer_load_dwordx4 {vr(acf(t,3),4)}, v{L16}, {sr(SRD_X,4)}, s{S_PL} offen offset:{t*1024}" + fl

MAPQ = True
def mapping():
    if not MAPQ:
        return f"""
    s_and_b32 s{S_HF}, s2, 1
    s_bfe_u32 s{S_MT}, s2, 0x20001
    s_lshl_b32 s{S_MT}, s{S_MT}, 2
    s_bfe_u32 s{S_T}, s2, 0x20003
    s_add_u32 s{S_MT}, s{S_MT}, s{S_T}
    s_lshr_b32 s{S_NP}, s2, 5"""
    return f"""
    s_bfe_u32 s{S_HF}, s2, 0x10003
    s_bfe_u32 s{S_MT}, s2, 0x20001
    s_lshl_b32 s{S_MT}, s{S_MT}, 2
    s_bfe_u32 s{S_T}, s2, 0x20004
    s_add_u32 s{S_MT}, s{S_MT}, s{S_T}
    s_and_b32 s{S_NP}, s2, 1
    s_lshl_b32 s{S_NP}, s{S_NP}, 2
    s_lshr_b32 s{S_T}, s2, 6
    s_add_u32 s{S_NP}, s{S_NP}, s{S_T}"""

def gen():
    a = Asm()
    a(f"""
    s_cmp_ge_u32 s2, 256
    s_cbranch_scc1 L_fi_end
    """)
    stamp(a, 0)
    a(f"""
    s_load_dwordx2 s[6:7], s[0:1], {KA_WS}
    s_load_dwordx2 s[8:9], s[0:1], {KA_X}
    s_load_dwordx2 s[10:11], s[0:1], {KA_OUT}
    v_lshrrev_b32 v2, 6, v0
    v_and_b32 v1, 63, v0
    {mapping()}
    v_readfirstlane_b32 s{S_W}, v2
    v_lshlrev_b32 v{L16}, 4, v1
    s_mov_b32 s{S_POLL}, 0
    s_cmp_ge_u32 s{S_W}, 4
    s_cbranch_scc0 L_fi_compute
    """)
    if "same" in EXP:
        a(f"s_mov_b32 s{S_MT}, 0")
        a(f"s_mov_b32 s{S_NP}, 0")
    a(f"""
    s_sub_u32 s{S_W}, s{S_W}, 4
    v_and_b32 v4, 7, v1
    v_bfe_u32 v5, v1, 4, 2
    v_lshlrev_b32 v5, 1, v5
    v_xor_b32 v4, v4, v5
    v_lshlrev_b32 v4, 4, v4
    v_lshrrev_b32 v3, 3, v1
    v_lshl_add_u32 v{VWA}, v3, 7, v4
    v_mov_b32 v{VX0}, v{L16}
    v_add_u32 v{VX1}, {114688 - 2048}, v{L16}
    v_add_u32 v{VX2}, {32768 - 2048}, v{L16}
    s_lshl_b32 s{S_M0W}, s{S_W}, 12
    s_add_u32 s{S_M0X}, s{S_M0W}, {XO}
    s_lshl_b32 s{S_M0W2}, s{S_W}, 11
    s_lshl_b32 s{S_T}, s{S_MT}, 3
    s_lshl_b32 s{S_T+1}, s{S_W}, 1
    s_add_u32 s{S_T}, s{S_T}, s{S_T+1}
    s_mul_i32 s{S_SX}, s{S_T}, 114688
    s_mul_i32 s{S_T+1}, s{S_HF}, {NFF*2048}
    s_add_u32 s{S_SX}, s{S_SX}, s{S_T+1}
    s_add_u32 s{S_SX}, s{S_SX}, {HF_OFF - 2048}
    s_lshl_b32 s{S_OX}, s{S_T}, 15
    s_add_u32 s{S_OX}, s{S_OX}, {OF_OFF - 2048}
    s_lshl_b32 s{S_T}, s{S_NP}, 1
    s_lshr_b32 s{S_T+1}, s{S_W}, 1
    s_add_u32 s{S_T+1}, s{S_T+1}, s{S_T}
    s_mul_i32 s{S_SW}, s{S_T+1}, {WT_TILE}
    s_and_b32 s{S_T+1}, s{S_W}, 1
    s_lshl_b32 s{S_T+1}, s{S_T+1}, 12
    s_add_u32 s{S_SW}, s{S_SW}, s{S_T+1}
    s_mul_i32 s{S_T+1}, s{S_HF}, {NFF*8192}
    s_add_u32 s{S_SW}, s{S_SW}, s{S_T+1}
    s_add_u32 s{S_SW}, s{S_SW}, {WT_OFF}
    s_add_u32 s{S_T}, s{S_T}, s{S_HF}
    s_mul_i32 s{S_SW2}, s{S_T}, {WT_TILE}
    s_add_u32 s{S_SW2}, s{S_SW2}, s{S_M0W2}
    s_add_u32 s{S_SW2}, s{S_SW2}, {WT_OFF + F*128}
    s_mov_b32 m0, s{S_M0W}
    s_waitcnt lgkmcnt(0)
    s_mov_b32 s{SRD_X}, s6
    s_mov_b32 s{SRD_X+1}, s7
    s_mov_b32 s{SRD_X+2}, {WS_USED}
    s_mov_b32 s{SRD_X+3}, 0x20000
    """)
    def loads(slot, ff, tail, m0next):
        for i in range(4 if ff else 2):
            a(f"buffer_load_dwordx4 v{VWA}, {sr(SRD_X,4)}, s{S_SW} offen offset:{i*1024} lds")
            if i == 0: a(f"s_add_u32 s{S_SX}, s{S_SX}, 2048")
        a(f"s_add_u32 m0, s{S_M0X}, {slot*SLOT}")
        a(f"s_add_u32 s{S_SW}, s{S_SW}, 8192")
        v1 = VX1 if ff else VX2
        a(f"buffer_load_dwordx4 v{VX0}, {sr(SRD_X,4)}, s{S_SX} offen lds")
        a(f"buffer_load_dwordx4 v{VX0}, {sr(SRD_X,4)}, s{S_SX} offen offset:1024 lds")
        a(f"buffer_load_dwordx4 v{v1}, {sr(SRD_X,4)}, s{S_SX} offen offset:2048 lds")
        a(f"buffer_load_dwordx4 v{v1}, {sr(SRD_X,4)}, s{S_SX} offen offset:3072 lds")
        if m0next:
            a(f"s_add_u32 m0, s{S_M0W if ff else S_M0W2}, {((slot + 1) % NS) * SLOT}")
        for x in tail: a(x)
    for x in xstamp(0): a(x)
    for st in range(4):
        if "noprio" not in EXP: a(f"s_setprio {3 - st}")
        loads(st, True, ["s_nop 0"], True)
        if st == 0:
            for x in xstamp(1): a(x)
    if "lprio" in EXP: a("s_setprio 3")
    for x in xstamp(2): a(x)
    a(f"s_mov_b32 s{S_CNT}, 5")
    a("s_waitcnt vmcnt(24)")
    for x in xstamp(3): a(x)
    a("s_barrier")
    stamp(a, 1)
    count = [f"s_sub_u32 s{S_CNT}, s{S_CNT}, 1", f"s_cmp_eq_u32 s{S_CNT}, 0"]
    a("L_fi_lff:")
    for slot in (4, 0, 1, 2):
        loads(slot, True, (count if slot == 2 else []) + ["s_waitcnt vmcnt(24)", "s_barrier"], True)
    a("s_cbranch_scc1 L_fi_lffd")
    loads(3, True, ["s_waitcnt vmcnt(24)", "s_barrier"], True)
    a("s_branch L_fi_lff")
    a("L_fi_lffd:")
    a(f"""
    s_add_u32 m0, s{S_M0W2}, {3*SLOT}
    s_mov_b32 s{S_SW}, s{S_SW2}
    s_mov_b32 s{S_SX}, s{S_OX}
    s_mov_b32 s{S_CNT}, 4
    """)
    a("L_fi_ls:")
    loads(3, False, count + ["s_waitcnt vmcnt(18)", "s_barrier"], True)
    a("s_cbranch_scc1 L_fi_lsd")
    for slot in (4, 0, 1, 2):
        loads(slot, False, ["s_waitcnt vmcnt(18)", "s_barrier"], True)
    a("s_branch L_fi_ls")
    a("L_fi_lsd:")
    for n in (12, 6, 0):
        a(f"s_waitcnt vmcnt({n})")
        a("s_barrier")
    stamp(a, 2)
    if PROF:
        a("s_add_u32 s24, s24, 4")
        stamp(a, 3)
        prof_store(a)
    a("s_endpgm")
    a("L_fi_compute:")
    a(f"""
    s_lshr_b32 s{S_T}, s{S_W}, 1
    s_and_b32 s{S_T+1}, s{S_W}, 1
    s_lshl_b32 s{S_XO}, s{S_MT}, 18
    s_lshl_b32 s{S_T+2}, s{S_NP}, 8
    s_add_u32 s{S_XO}, s{S_XO}, s{S_T+2}
    s_lshl_b32 s{S_T+2}, s{S_T}, 17
    s_add_u32 s{S_XO}, s{S_XO}, s{S_T+2}
    s_lshl_b32 s{S_T+2}, s{S_T+1}, 7
    s_add_u32 s{S_XO}, s{S_XO}, s{S_T+2}
    s_lshl_b32 s{S_T+2}, s{S_HF}, 6
    s_add_u32 s{S_XO}, s{S_XO}, s{S_T+2}
    s_add_u32 s{S_XO+1}, s{S_XO}, 32768
    s_add_u32 s{S_XO+2}, s{S_XO}, 65536
    s_add_u32 s{S_XO+3}, s{S_XO}, 98304
    v_and_b32 v4, 15, v1
    v_lshlrev_b32 v4, 11, v4
    v_bfe_u32 v5, v1, 4, 1
    v_lshl_add_u32 v4, v5, 5, v4
    v_lshrrev_b32 v5, 5, v1
    v_lshl_add_u32 v{VXO}, v5, 4, v4
    s_waitcnt lgkmcnt(0)
    s_mov_b32 s{SRD_IN}, s8
    s_mov_b32 s{SRD_IN+1}, s9
    s_mov_b32 s{SRD_IN+2}, {S*D*2}
    s_mov_b32 s{SRD_IN+3}, 0x20000
    s_mov_b32 s{SRD_OUT}, s10
    s_mov_b32 s{SRD_OUT+1}, s11
    s_mov_b32 s{SRD_OUT+2}, {S*D*2}
    s_mov_b32 s{SRD_OUT+3}, 0x20000
    s_mov_b32 s{SRD_X}, s6
    s_mov_b32 s{SRD_X+1}, s7
    s_mov_b32 s{SRD_X+2}, {WS_USED}
    s_mov_b32 s{SRD_X+3}, 0x20000
    """)
    for t in range(4):
        a(f"buffer_load_dwordx4 {vr(XIN+4*t,4)}, v{VXO}, {sr(SRD_IN,4)}, s{S_XO+t} offen")
    a(f"""
    v_lshrrev_b32 v3, 4, v1
    v_bfe_u32 v4, v1, 2, 2
    v_and_b32 v5, 3, v1
    v_lshl_add_u32 v6, v3, 2, v4
    v_lshrrev_b32 v7, 1, v6
    v_and_b32 v7, 3, v7
    v_lshlrev_b32 v7, 5, v7
    v_lshlrev_b32 v6, 7, v6
    v_lshl_add_u32 v6, v5, 3, v6
    s_lshl_b32 s{S_T+2}, s{S_T+1}, 13
    v_add_u32 v9, s{S_T+2}, v6
    s_lshl_b32 s{S_T+3}, s{S_HF}, 6
    s_lshl_b32 s{S_T+4}, s{S_T+1}, 6
    """)
    for b in range(4):
        a(f"s_xor_b32 s{S_T+2}, s{S_T+3}, {32*b}")
        a(f"v_xor_b32 v8, s{S_T+2}, v7")
        a(f"v_add_u32 v{TA+b}, v9, v8")
        a(f"v_add_u32 v{TA+4+b}, {2*SLOT}, v{TA+b}")
        a(f"v_add_u32 v{TA+8+b}, {4*SLOT}, v{TA+b}")
    for b in range(2):
        a(f"s_add_u32 s{S_T+2}, s{S_T+4}, {32*b}")
        a(f"v_xor_b32 v8, s{S_T+2}, v7")
        a(f"v_add_u32 v{TS+b}, v6, v8")
        a(f"v_add_u32 v{TS+2+b}, {2*SLOT}, v{TS+b}")
        a(f"v_add_u32 v{TS+4+b}, {4*SLOT}, v{TS+b}")
    a(f"""
    s_lshl_b32 s{S_T+2}, s{S_T}, 13
    s_add_u32 s{S_T+2}, s{S_T+2}, {XO}
    v_add_u32 v{XA}, s{S_T+2}, v{L16}
    v_add_u32 v{XA+1}, {2*SLOT}, v{XA}
    v_add_u32 v{XA+2}, {4*SLOT}, v{XA}
    s_lshl_b32 s{S_T}, s2, 2
    s_add_u32 s{S_T}, s{S_T}, s{S_W}
    s_xor_b32 s{S_T+1}, s{S_T}, {32 if MAPQ else 4}
    s_lshl_b32 s{S_PS}, s{S_T}, 12
    s_add_u32 s{S_PS}, s{S_PS}, {PX_OFF}
    s_lshl_b32 s{S_PL}, s{S_T+1}, 12
    s_add_u32 s{S_PL}, s{S_PL}, {PX_OFF}
    {"s_mov_b32 s%d, s%d" % (S_PL, S_PS) if "ownld" in EXP else ""}
    {"s_mov_b32 s%d, 0x7fff0000" % S_PL if "oobld" in EXP else ""}
    s_mov_b32 s{S_ONE}, 1.0
    s_mov_b32 s{S_ONE+1}, 1.0
    s_mov_b32 s{S_NL2E}, {f32hex(-1.4426950408889634)}
    s_mov_b32 s{S_NL2E+1}, {f32hex(-1.4426950408889634)}
    s_mov_b32 s{S_MASK}, 0xffff0000
    s_barrier
    """)
    stamp(a, 1)
    if "tl" in EXP:
        a("s_mov_b32 m0, 0")
        a("s_memtime s[94:95]")

    def interval(s, ex0=(), ex1=(), pre0=None, pre1=None, tail=()):
        if pre0: pre0()
        if s == 0:
            for r in reads(0, 0): a(r)
            a("s_waitcnt lgkmcnt(0)")
        else:
            half(a, mfmas(s-1, 1), reads(s, 0), ex0)
        if pre1: pre1()
        if "tl" in EXP:
            a(f"v_writelane_b32 v{VTL}, s94, m0")
            a("s_add_u32 m0, m0, 1")
            half(a, mfmas(s, 0), reads(s, 1), ex1)
            for x in tail: a(x)
        else:
            half(a, mfmas(s, 0), reads(s, 1), list(tail) + list(ex1))
        if s < NST - 1: a("s_barrier")
        if "tl" in EXP: a("s_memtime s[94:95]")

    interval(0)
    a(f"s_mov_b32 s{S_CNT}, 6")
    a(".p2align 6")
    a("L_fi_cloop:")
    for s in range(1, 6):
        interval(s, tail=[f"s_sub_u32 s{S_CNT}, s{S_CNT}, 1", f"s_cmp_eq_u32 s{S_CNT}, 0"] if s == 2 else ())
        if s == 2: a("s_cbranch_scc1 L_fi_cdone")
    a("s_branch L_fi_cloop")
    a("L_fi_cdone:")
    stamp(a, 2)
    ex = {}
    def add(h, lst): ex.setdefault(h, []).extend(lst)
    for t in range(4): add(H_STORE[t], pack_store(t))
    add(H_STORE[3], xstamp(0))
    for t in range(4): add(H_LOAD[t], [recv(t, LDFL)])
    work = []
    for t in range(4):
        for b in range(2): work += silu_block(t, b)
    nh = H_SEND + 1 - H_SILU
    for n in range(nh):
        add(H_SILU + n, work[n*len(work)//nh:(n+1)*len(work)//nh])
    def check():
        lab, ok = a.newlabel("fi_poll"), a.newlabel("fi_ok")
        r = [acf(t, 3) + j for t in range(4) for j in range(4)]
        a(f"{lab}:")
        a("s_waitcnt vmcnt(0)")
        for x in xstamp(2): a(x)
        a(f"v_max3_u32 v{VCHK}, v{r[0]}, v{r[1]}, v{r[2]}")
        for j in range(3, 15, 2):
            a(f"v_max3_u32 v{VCHK}, v{r[j]}, v{r[j+1]}, v{VCHK}")
        a(f"v_max_u32 v{VCHK}, v{r[15]}, v{VCHK}")
        a(f"""
        v_cmp_eq_u32 vcc, -1, v{VCHK}
        s_cbranch_vccz {ok}
        s_add_u32 s{S_POLL}, s{S_POLL}, 1
        s_cmp_lt_u32 s{S_POLL}, {POLL_MAX}
        s_cbranch_scc0 {ok}
        """)
        for t in range(4): a(recv(t, " sc0 sc1"))
        a(f"s_branch {lab}")
        a(f"{ok}:")
        for x in xstamp(1): a(x)
    assert H_CHECK > max(H_LOAD) and H_SILU >= H_CHECK and min(H_LOAD) > max(H_STORE)
    for s in range(NFF, NST):
        q = s - NFF
        h0, h1 = 2*q - 1, 2*q
        interval(s, ex.get(h0, []), ex.get(h1, []),
                 pre0=check if H_CHECK == h0 else None, pre1=check if H_CHECK == h1 else None)
    last = mfmas(NST-1, 1)
    lx = ex.get(2*NSS - 1, [])
    for m in last: a(m)
    for x in lx: a(x)
    for x in xstamp(3): a(x)
    for t in range(4):
        x = XIN + 4*t
        a(f"v_permlane16_swap_b32 v{x}, v{x+2}")
        a(f"v_permlane16_swap_b32 v{x+1}, v{x+3}")
    a("s_nop 7")
    for t in range(4):
        x = XIN + 4*t
        for h in range(2):
            d, g = acs(t, h), acf(t, h)
            for q in range(2):
                xv = x + 2*h + q
                a(f"v_lshlrev_b32 v2, 16, v{xv}")
                a(f"v_and_b32 v3, 0xffff0000, v{xv}")
                a(f"v_fmac_f32 v2, v{d+2*q}, v{g+2*q}")
                a(f"v_fmac_f32 v3, v{d+2*q+1}, v{g+2*q+1}")
                a(f"v_cvt_pk_bf16_f32 v{xv}, v2, v3")
        a("s_nop 1")
        a(f"v_permlane16_swap_b32 v{x}, v{x+2}")
        a(f"v_permlane16_swap_b32 v{x+1}, v{x+3}")
        a("s_nop 1")
        a(f"buffer_store_dwordx4 {vr(x,4)}, v{VXO}, {sr(SRD_OUT,4)}, s{S_XO+t} offen")
    if PROF:
        a("s_waitcnt vmcnt(0)")
        stamp(a, 3)
        prof_store(a)
        if "tl" in EXP:
            a(f"""
            s_waitcnt lgkmcnt(0)
            v_writelane_b32 v{VTL}, s94, m0
            s_lshl_b32 s{S_T}, s2, 3
            s_add_u32 s{S_T}, s{S_T}, s{S_W}
            s_lshl_b32 s{S_T}, s{S_T}, 8
            s_add_u32 s{S_T}, s{S_T}, {PROF_OFF + 0x300000}
            v_lshlrev_b32 v2, 2, v1
            buffer_store_dword v{VTL}, v2, {sr(SRD_X,4)}, s{S_T} offen
            """)
    a("L_fi_end:")
    a("s_endpgm")
    return a.text()
```

```python
from asmlib import *
from layout import *
import struct

NAME = "gemm1_kernel"
SLOT = 36864
LDS = 4 * SLOT
XREG = 20480
WF = 16
XF = 36
TA = 68
XA = 80
DV = 82
L16 = 86
ACC = 96
SRD_G = 12
SRD_WS = 32
SOFF = 36
SINC = 40
S_M0 = 44
S_CNT = 45
S_X8, S_CL, S_MT, S_W, S_CG = 46, 47, 48, 49, 50
S_T = 52
S_EP = 60
VCD, VCX = 88, 92
SRD_CS = 88
S_CSRC, S_CDST, S_CM3, S_CSO, S_CDO = 92, 93, 94, 95, 68
S_PWO, S_PWD = 96, 98
OOB = 0x7fff0000

def acc(p, t): return ACC + (p*4 + t)*4
def wf(p): return WF + (p % 5)*4
def xf(b, t): return XF + b*16 + t*4

BLK_REG = [0, 1, 2, 2, 3, 3, 4, 4, 5, 5]
BLK_IMM = [0, 0, 1024, 2048, 1024, 2048, 1024, 2048, 1024, 2048]

def mfma(p, t, xb, vswap, czero=False):
    d = acc(p, t)
    c = "0" if czero else vr(d, 4)
    A, B = vr(wf(p), 4), vr(xf(xb, t), 4)
    if vswap and p < 2:
        A, B = B, A
    return f"v_mfma_f32_16x16x32_bf16 {vr(d,4)}, {A}, {B}, {c}"

def wread(p, slot):
    reg = TA + (slot >> 1)*6 + BLK_REG[p]
    off = (slot & 1)*SLOT + BLK_IMM[p]
    return [f"ds_read_b64_tr_b16 {vr(wf(p),2)}, v{reg} offset:{off}",
            f"ds_read_b64_tr_b16 {vr(wf(p)+2,2)}, v{reg} offset:{off+512}"]

def xread(xb, slot):
    reg = XA + (slot >> 1)
    return [f"ds_read_b128 {vr(xf(xb,t),4)}, v{reg} offset:{(slot&1)*SLOT + t*1024}" for t in range(4)]

def dma_ops(role, slot):
    if role == "W":
        so = [SOFF, SOFF+1, SOFF+1, SOFF+2, SOFF+2]
        dv = [DV, DV+1, DV+1, DV+2, DV+2]
        ops = []
        for g in range(5):
            grp = []
            if g == 0: grp += [f"s_add_u32 m0, s{S_M0}, {slot*SLOT}", "s_nop 0"]
            if g == 4: grp += [f"s_add_u32 m0, s{S_M0}, {slot*SLOT + 4096}", "s_nop 0"]
            imm = (g & 3)*1024
            grp.append(f"buffer_load_dwordx4 v{dv[g]}, {sr(SRD_G+4*g,4)}, s{so[g]} offen offset:{imm} lds")
            if g in (0, 2, 4):
                k = g >> 1
                grp.append(f"s_add_u32 s{SOFF+k}, s{SOFF+k}, s{SINC+k}")
            ops.append(grp)
        return ops
    ops = []
    for i in range(4):
        grp = []
        if i == 0: grp += [f"s_add_u32 m0, s{S_M0}, {slot*SLOT}", "s_nop 0"]
        grp.append(f"buffer_load_dwordx4 v{DV+i}, {sr(SRD_WS,4)}, s{SOFF} offen offset:{i*1024} lds")
        if i == 3: grp.append(f"s_add_u32 s{SOFF}, s{SOFF}, 1024")
        ops.append(grp)
    return ops

def emit(a, lst):
    for s in lst: a(s)

CEXP = ""
COPY = False
def copy_load():
    so = "s69" if "noload" in CEXP else f"s{S_CSRC}"
    return [f"buffer_load_dwordx4 {vr(VCX,4)}, v{L16}, {sr(SRD_CS,4)}, {so} offen"]
def copy_store(n):
    so = "s69" if "nostore" in CEXP else f"s{S_CDST}"
    fl = " sc1" if "sc1" in CEXP else ""
    fl += " sc0" if "sc0" in CEXP else ""
    fl += " nt" if "nt" in CEXP else ""
    return [f"s_waitcnt vmcnt({2*n})",
            f"buffer_store_dwordx4 {vr(VCX,4)}, v{VCD}, {sr(SRD_WS,4)}, {so} offen{fl}"]
def copy_next():
    return [f"s_add_u32 s{S_CSRC}, s{S_CSRC}, 8192",
            f"s_add_u32 s{S_CDST}, s{S_CDST}, 512",
            f"s_cmp_eq_u32 s{S_CNT}, 5",
            f"s_cselect_b32 s{S_T}, s{S_CM3}, 0",
            f"s_or_b32 s{S_CSRC}, s{S_CSRC}, s{S_T}",
            f"s_or_b32 s{S_CDST}, s{S_CDST}, s{S_T}",
            f"s_cmp_eq_u32 s{S_CNT}, 4",
            f"s_cselect_b32 s{S_CSRC}, s{S_CSO}, s{S_CSRC}",
            f"s_cselect_b32 s{S_CDST}, s{S_CDO}, s{S_CDST}",
            f"s_cselect_b32 s{SRD_CS}, s{S_PWO}, s{SRD_CS}",
            f"s_cselect_b32 s{SRD_CS+1}, s{S_PWO+1}, s{SRD_CS+1}",
            f"s_cselect_b32 s{SRD_CS+2}, {D*D*2}, s{SRD_CS+2}",
            f"s_cmp_eq_u32 s{S_CNT}, 3",
            f"s_cselect_b32 s{S_T}, {OOB}, 0",
            f"s_or_b32 s{S_CSRC}, s{S_CSRC}, s{S_T}",
            f"s_or_b32 s{S_CDST}, s{S_CDST}, s{S_T}"]

def interval(a, role, vswap, s, dma, first=False, pre=(), post=(), late=()):
    slot = s & 3
    xb = s & 1
    seq = ([] if first else [(7, 1-xb), (8, 1-xb), (9, 1-xb)]) + [(p, xb) for p in range(7)]
    fills = {}
    def add(i, j, lst): fills.setdefault((i, j), []).extend(lst)
    if first:
        emit(a, xread(xb, slot) + wread(0, slot) + wread(1, slot) + wread(2, slot))
        base = 0
    else:
        xr = xread(xb, slot)
        add(0, 0, xr[0:2]); add(0, 1, xr[2:4]); add(0, 2, wread(0, slot))
        add(1, 1, wread(1, slot))
        add(2, 1, wread(2, slot))
        base = 3
    for p in range(5):
        add(base + p, 1, wread(p + 3, slot))
    add(base + 5, 0, wread(8, slot))
    add(base + 5, 1, wread(9, slot))
    if dma:
        ops = dma_ops(role, (s + 3) & 3)
        pos = [(base + 0, 3), (base + 1, 3), (base + 2, 3), (base + 3, 3), (base + 4, 3)]
        if not first:
            pos = [(1, 3), (2, 3), (3, 3), (4, 3), (5, 3)]
        for g, o in zip(pos, ops): add(g[0], g[1], o)
    add(0, 3, list(pre))
    add(6, 3, list(post))
    for i, x in enumerate(late): add(7 + i // 6, (i % 6) // 2, [x])
    for i, (p, b) in enumerate(seq):
        if p < 7:
            a("s_waitcnt lgkmcnt(4)" if p < 6 else "s_waitcnt lgkmcnt(6)")
        for t in range(4):
            a(mfma(p, t, b, vswap, czero=(first and p < 7)))
            emit(a, fills.get((i, t), []))

def tail(a, vswap):
    for p in (7, 8, 9):
        for t in range(4):
            a(mfma(p, t, 1, vswap))

def mainloop(a, role, vswap):
    n = 5 if role == "W" else 4
    tag = f"{role}{int(vswap)}"
    for s in range(3):
        for g in dma_ops(role, s): emit(a, g)
    common_setup(a)
    a(f"s_waitcnt vmcnt({2*n})")
    a("s_barrier")
    interval(a, role, vswap, 0, True, first=True, post=copy_load() if COPY else ())
    a(f"s_waitcnt vmcnt({2*n+(1 if COPY else 0)}) lgkmcnt(0)")
    a("s_barrier")
    a(f"s_mov_b32 s{S_CNT}, 7")
    stamp(a, 1)
    a(".p2align 6")
    a(f"L_g1_loop_{tag}:")
    for s in (1, 2, 3, 4):
        if s == 1 and COPY: interval(a, role, vswap, s, True, post=copy_load())
        elif s == 4 and COPY: interval(a, role, vswap, s, True, pre=copy_store(n), late=copy_next())
        else: interval(a, role, vswap, s, True)
        if s == 4:
            a(f"s_sub_u32 s{S_CNT}, s{S_CNT}, 1")
            a(f"s_cmp_lg_u32 s{S_CNT}, 0")
        a(f"s_waitcnt vmcnt({2*n + ((2 if s == 1 else 1) if COPY else 0)}) lgkmcnt(0)")
        a("s_barrier")
    a(f"s_cbranch_scc1 L_g1_loop_{tag}")
    interval(a, role, vswap, 29, False)
    a(f"s_waitcnt vmcnt({n}) lgkmcnt(0)")
    a("s_barrier")
    interval(a, role, vswap, 30, False)
    a(f"s_waitcnt vmcnt(0) lgkmcnt(0)")
    a("s_barrier")
    interval(a, role, vswap, 31, False)
    a(f"s_waitcnt lgkmcnt(0)")
    tail(a, vswap)
    a("s_branch L_g1_epi")

def f32hex(x):
    return "0x%08x" % struct.unpack("<I", struct.pack("<f", x))[0]

PROF = False
def stamp(a, i):
    if PROF:
        a(f"s_memtime s[{70+4*i}:{71+4*i}]")
        a(f"s_memrealtime s[{72+4*i}:{73+4*i}]")

def prof_store(a):
    if not PROF: return
    a(f"""
    s_waitcnt lgkmcnt(0)
    s_lshl_b32 s{S_T}, s2, 3
    s_add_u32 s{S_T}, s{S_T}, s{S_W}
    s_lshl_b32 s{S_T}, s{S_T}, 6
    s_add_u32 s{S_T}, s{S_T}, {PROF_OFF}
    s_mov_b32 s{SRD_WS+2}, 0x4000000
    """)
    for i in range(4):
        a(f"v_mov_b32 v{4+2*i}, s{70+4*i}")
        a(f"v_mov_b32 v{5+2*i}, s{72+4*i}")
    a(f"""
    v_mov_b32 v2, 0
    buffer_store_dwordx4 v[4:7], v2, {sr(SRD_WS,4)}, s{S_T} offen
    buffer_store_dwordx4 v[8:11], v2, {sr(SRD_WS,4)}, s{S_T} offen offset:16
    """)

def common_setup(a):
    a(f"""
    v_lshrrev_b32 v3, 4, v1
    v_bfe_u32 v4, v1, 2, 2
    v_and_b32 v5, 3, v1
    v_mul_u32_u24 v6, 5120, v3
    v_lshl_add_u32 v6, v4, 7, v6
    v_lshl_add_u32 v6, v5, 3, v6
    v_lshrrev_b32 v7, 1, v4
    v_lshlrev_b32 v7, 5, v7
    v_and_b32 v8, 1, v3
    v_lshl_or_b32 v7, v8, 6, v7
    s_lshl_b32 s{S_T}, s{S_CG}, 6
    v_xor_b32 v8, s{S_T}, v7
    v_add_u32 v{TA+0}, v6, v8
    v_xor_b32 v8, 32, v8
    v_add_u32 v{TA+1}, v6, v8
    s_cmp_eq_u32 s{S_CL}, 0
    """)
    lab = a.newlabel("g1_taB")
    done = a.newlabel("g1_ta_done")
    a(f"s_cbranch_scc1 {lab}")
    a(f"s_lshl_b32 s{S_T}, s{S_CG}, 11")
    a(f"v_add_u32 v9, s{S_T}, v6")
    for b in range(4):
        a(f"v_xor_b32 v8, {32*b}, v7")
        a(f"v_add_u32 v{TA+2+b}, v9, v8")
    a(f"s_branch {done}")
    a(f"{lab}:")
    a(f"""
    v_mov_b32 v{TA+2}, v{TA+0}
    v_mov_b32 v{TA+3}, v{TA+1}
    v_add_u32 v{TA+4}, 2048, v{TA+0}
    v_add_u32 v{TA+5}, 2048, v{TA+1}
    """)
    a(f"{done}:")
    for i in range(6):
        a(f"v_add_u32 v{TA+6+i}, {2*SLOT}, v{TA+i}")
    a(f"""
    s_and_b32 s{S_T}, s{S_W}, 3
    s_lshl_b32 s{S_T+1}, s{S_T}, 12
    s_add_u32 s{S_T+1}, s{S_T+1}, {XREG}
    v_add_u32 v{XA}, s{S_T+1}, v{L16}
    v_add_u32 v{XA+1}, {2*SLOT}, v{XA}
    """)
    if COPY: a(f"""
    v_lshrrev_b32 v3, 3, v1
    v_and_b32 v4, 7, v1
    v_mul_u32_u24 v3, {WT_TILE}, v3
    v_lshl_add_u32 v{VCD}, v4, 4, v3
    s_lshr_b32 s{S_T}, s{S_W}, 1
    s_and_b32 s{S_T+1}, s{S_W}, 1
    s_mul_i32 s{S_T+2}, s2, 14
    s_add_u32 s{S_T+2}, s{S_T+2}, s{S_T}
    s_lshl_b32 s{S_T+3}, s2, 2
    s_add_u32 s{S_T+3}, s{S_T+3}, s{S_T}
    s_lshl_b32 s{S_T+4}, s{S_T+1}, 10
    s_mul_i32 s{S_T+5}, s{S_T+1}, {8*WT_TILE}
    s_add_u32 s{S_T+5}, s{S_T+5}, {WT_OFF}
    s_lshl_b32 s{S_CSRC}, s{S_T+2}, 11
    s_add_u32 s{S_CSRC}, s{S_CSRC}, s{S_T+4}
    s_lshl_b32 s{S_CDST}, s{S_T+2}, 7
    s_add_u32 s{S_CDST}, s{S_CDST}, s{S_T+5}
    s_lshl_b32 s{S_CSO}, s{S_T+3}, 11
    s_add_u32 s{S_CSO}, s{S_CSO}, s{S_T+4}
    s_add_u32 s{S_T+3}, s{S_T+3}, {F}
    s_lshl_b32 s{S_CDO}, s{S_T+3}, 7
    s_add_u32 s{S_CDO}, s{S_CDO}, s{S_T+5}
    s_cmp_ge_u32 s{S_W}, 4
    s_cselect_b32 s{S_CM3}, {OOB}, 0
    s_mov_b32 s69, {OOB}
    s_mov_b32 s{SRD_CS}, s{S_PWD}
    s_mov_b32 s{SRD_CS+1}, s{S_PWD+1}
    s_mov_b32 s{SRD_CS+2}, {F*D*2}
    s_mov_b32 s{SRD_CS+3}, 0x20000
    """)
    for p in (7, 8, 9):
        for t in range(4):
            for j in range(4):
                a(f"v_mov_b32 v{acc(p,t)+j}, 0")

def gen():
    a = Asm()
    a(f"""
    s_cmp_ge_u32 s2, 256
    s_cbranch_scc1 L_g1_end
    """)
    stamp(a, 0)
    a(f"""
    s_load_dwordx2 s[4:5], s[0:1], {KA_WQKV}
    s_load_dwordx4 s[8:11], s[0:1], {KA_WG}
    s_load_dwordx2 s[6:7], s[0:1], {KA_WS}
    v_lshrrev_b32 v2, 6, v0
    v_and_b32 v1, 63, v0
    s_and_b32 s{S_X8}, s2, 7
    s_bfe_u32 s{S_CL}, s2, 0x20003
    s_lshr_b32 s{S_MT}, s2, 5
    v_readfirstlane_b32 s{S_W}, v2
    v_lshlrev_b32 v{L16}, 4, v1
    s_lshr_b32 s{S_CG}, s{S_W}, 2
    s_cmp_ge_u32 s{S_W}, 4
    s_cbranch_scc1 L_g1_roleX
    """)
    a(f"""
    v_and_b32 v4, 7, v1
    v_bfe_u32 v5, v1, 4, 1
    v_lshlrev_b32 v5, 1, v5
    v_xor_b32 v4, v4, v5
    s_and_b32 s{S_T}, s{S_W}, 1
    s_lshl_b32 s{S_T}, s{S_T}, 2
    v_xor_b32 v4, s{S_T}, v4
    v_lshlrev_b32 v4, 4, v4
    v_lshrrev_b32 v3, 3, v1
    s_lshl_b32 s{S_T}, s{S_W}, 3
    v_add_u32 v3, s{S_T}, v3
    v_mov_b32 v6, 6144
    v_mov_b32 v7, 7168
    v_mad_u32_u24 v{DV+0}, v3, v6, v4
    v_mad_u32_u24 v{DV+2}, v3, v7, v4
    s_mul_i32 s{S_M0}, s{S_W}, 5120
    s_mov_b32 s{SOFF+0}, 0
    s_mov_b32 s{SOFF+1}, 0
    s_mov_b32 s{SOFF+2}, 0
    s_mov_b32 s{SINC+0}, {6144*32}
    s_mov_b32 s{SINC+2}, {7168*32}
    s_lshl_b32 s{S_T}, s{S_X8}, 7
    s_mul_i32 s{S_T+1}, s{S_X8}, {7*128}
    s_cmp_eq_u32 s{S_CL}, 0
    s_cbranch_scc0 L_g1_typeA
    """)
    def srd(g, lo, hi, col, total):
        comp = (g & 3)*1024
        b = SRD_G + 4*g
        a(f"s_sub_u32 s{S_T+7}, {col}, {comp}")
        a(f"s_ashr_i32 s{S_T+6}, s{S_T+7}, 31")
        a(f"s_add_u32 s{b}, s{lo}, s{S_T+7}")
        a(f"s_addc_u32 s{b+1}, s{hi}, s{S_T+6}")
        a(f"s_sub_u32 s{b+2}, {total}, s{S_T+7}")
        a(f"s_mov_b32 s{b+3}, 0x20000")
    TQ, TG = 1024*6144, 1024*7168
    a(f"""
    v_mov_b32 v{DV+1}, v{DV+0}
    s_mov_b32 s{SINC+1}, {6144*32}
    s_add_u32 s{S_T+2}, s{S_T}, 4096
    s_add_u32 s{S_T+3}, s{S_T}, 2048
    s_waitcnt lgkmcnt(0)
    """)
    srd(0, 4, 5, f"s{S_T+2}", TQ)
    srd(1, 4, 5, f"s{S_T}", TQ)
    srd(2, 4, 5, f"s{S_T+3}", TQ)
    srd(3, 8, 9, f"s{S_T+1}", TG)
    srd(4, 10, 11, f"s{S_T+1}", TG)
    a("s_branch L_g1_roleWV")
    a("L_g1_typeA:")
    a(f"""
    v_mov_b32 v{DV+1}, v{DV+2}
    s_mov_b32 s{SINC+1}, {7168*32}
    s_sub_u32 s{S_T+4}, s{S_CL}, 1
    s_lshl_b32 s{S_T+2}, s{S_T+4}, 11
    s_add_u32 s{S_T+2}, s{S_T+2}, s{S_T}
    s_add_u32 s{S_T+2}, s{S_T+2}, 1024
    s_lshl_b32 s{S_T+3}, s{S_T+4}, 8
    s_add_u32 s{S_T+3}, s{S_T+3}, s{S_T+1}
    s_add_u32 s{S_T+3}, s{S_T+3}, 128
    s_add_u32 s{S_T+4}, s{S_T+3}, 128
    s_waitcnt lgkmcnt(0)
    """)
    srd(0, 4, 5, f"s{S_T+2}", TQ)
    srd(1, 8, 9, f"s{S_T+3}", TG)
    srd(2, 10, 11, f"s{S_T+3}", TG)
    srd(3, 8, 9, f"s{S_T+4}", TG)
    srd(4, 10, 11, f"s{S_T+4}", TG)
    a(f"""
    s_cmp_eq_u32 s{S_CL}, 3
    s_cbranch_scc1 L_g1_roleWV
    """)
    ws_srd = f"""
    s_mov_b32 s{SRD_WS}, s6
    s_mov_b32 s{SRD_WS+1}, s7
    s_mov_b32 s{SRD_WS+2}, {WS_USED}
    s_mov_b32 s{SRD_WS+3}, 0x20000
    """
    a(ws_srd)
    mainloop(a, "W", False)
    a("L_g1_roleWV:")
    a(ws_srd)
    mainloop(a, "W", True)
    a("L_g1_roleX:")
    a(f"""
    s_sub_u32 s{S_T}, s{S_W}, 4
    s_lshl_b32 s{S_M0}, s{S_T}, 12
    s_add_u32 s{S_M0}, s{S_M0}, {XREG}
    s_lshl_b32 s{S_T}, s{S_T}, 2
    s_lshl_b32 s{S_T+1}, s{S_MT}, 4
    s_add_u32 s{S_T}, s{S_T}, s{S_T+1}
    s_lshl_b32 s{SOFF}, s{S_T}, 15
    s_add_u32 s{SOFF}, s{SOFF}, {XN_OFF}
    v_mov_b32 v{DV}, v{L16}
    v_add_u32 v{DV+1}, {1*31744}, v{L16}
    v_add_u32 v{DV+2}, {2*31744}, v{L16}
    v_add_u32 v{DV+3}, {3*31744}, v{L16}
    s_waitcnt lgkmcnt(0)
    """)
    a(ws_srd)
    a(f"""
    s_cmp_eq_u32 s{S_CL}, 0
    s_cbranch_scc1 L_g1_roleXV
    s_cmp_eq_u32 s{S_CL}, 3
    s_cbranch_scc1 L_g1_roleXV
    """)
    mainloop(a, "X", False)
    a("L_g1_roleXV:")
    mainloop(a, "X", True)

    a("L_g1_epi:")
    stamp(a, 2)
    VQK, VV, VH = 2, 3, 4
    a(f"""
    s_and_b32 s{S_T}, s{S_W}, 3
    s_lshl_b32 s{S_T}, s{S_T}, 1
    s_lshl_b32 s{S_T+1}, s{S_MT}, 3
    s_add_u32 s{S_EP}, s{S_T}, s{S_T+1}
    s_lshl_b32 s{S_EP+1}, s{S_EP}, 11
    s_mul_i32 s{S_EP+2}, s{S_EP}, {2*112*1024}
    s_add_u32 s{S_EP+2}, s{S_EP+2}, {HF_OFF}
    s_mul_i32 s{S_EP+3}, s{S_X8}, 7
    s_lshl_b32 s{S_EP+4}, s{S_X8}, 1
    s_add_u32 s{S_EP+4}, s{S_EP+4}, s{S_CG}
    v_lshrrev_b32 v8, 4, v1
    v_and_b32 v9, 15, v1
    v_lshrrev_b32 v10, 1, v8
    v_and_b32 v11, 1, v8
    v_lshlrev_b32 v12, 4, v9
    v_lshl_add_u32 v12, v11, 9, v12
    v_lshl_add_u32 v{VQK}, v10, 10, v12
    v_lshl_add_u32 v{VV}, v10, 8, v12
    v_mov_b32 v{VH}, v{L16}
    v_add_u32 v{VH+1}, {1*114688}, v{L16}
    v_add_u32 v{VH+2}, {2*114688}, v{L16}
    v_add_u32 v{VH+3}, {3*114688}, v{L16}
    s_mov_b32 s{S_T+4}, {f32hex(QSCALE)}
    s_mov_b32 s{S_T+5}, s{S_T+4}
    s_nop 7
    """)
    def pack(pa, pb, t):
        da, db = acc(pa, t), acc(pb, t)
        a(f"v_cvt_pk_bf16_f32 v{da}, v{da}, v{da+1}")
        a(f"v_cvt_pk_bf16_f32 v{da+1}, v{da+2}, v{da+3}")
        a(f"v_cvt_pk_bf16_f32 v{da+2}, v{db}, v{db+1}")
        a(f"v_cvt_pk_bf16_f32 v{da+3}, v{db+2}, v{db+3}")
        return da
    def qk_store(pa, pb, scale, sreg):
        for t in range(4):
            if scale:
                for p in (pa, pb):
                    d = acc(p, t)
                    a(f"v_pk_mul_f32 {vr(d,2)}, {vr(d,2)}, {sr(S_T+4,2)}")
                    a(f"v_pk_mul_f32 {vr(d+2,2)}, {vr(d+2,2)}, {sr(S_T+4,2)}")
            d = pack(pa, pb, t)
            a(f"buffer_store_dwordx4 {vr(d,4)}, v{VQK}, {sr(SRD_WS,4)}, s{sreg} offen offset:{(t&1)*256 + (t>>1)*2048}")
    def v_store(pa, pb, sreg):
        for t in range(4):
            d = pack(pa, pb, t)
            a("s_nop 1")
            a(f"v_permlane32_swap_b32 v{d}, v{d+2}")
            a(f"v_permlane32_swap_b32 v{d+1}, v{d+3}")
            a("s_nop 1")
            a(f"buffer_store_dwordx4 {vr(d,4)}, v{VV}, {sr(SRD_WS,4)}, s{sreg} offen offset:{(t&1)*1024 + (t>>1)*2048}")
    def h_store(g0, sreg, imm):
        for t in range(4):
            for g in (g0, g0+2):
                dg, du = acc(g, t), acc(g+1, t)
                for j in range(4):
                    a(f"v_max_f32 v{dg+j}, 0, v{dg+j}")
                a(f"v_pk_mul_f32 {vr(dg,2)}, {vr(dg,2)}, {vr(du,2)}")
                a(f"v_pk_mul_f32 {vr(dg+2,2)}, {vr(dg+2,2)}, {vr(du+2,2)}")
            d = pack(g0, g0+2, t)
            a(f"buffer_store_dwordx4 {vr(d,4)}, v{VH+t}, {sr(SRD_WS,4)}, s{sreg} offen offset:{imm}")
    def head_dest(dst, base, head_add):
        a(f"s_add_u32 s{dst}, s{S_EP+4}, {head_add}")
        a(f"s_lshl_b32 s{dst}, s{dst}, 17")
        a(f"s_add_u32 s{dst}, s{dst}, s{S_EP+1}")
        a(f"s_add_u32 s{dst}, s{dst}, {base}")
    a(f"s_cmp_eq_u32 s{S_CL}, 0")
    a("s_cbranch_scc1 L_g1_eB")
    a(f"""
    s_sub_u32 s{S_T}, s{S_CL}, 1
    s_lshl_b32 s{S_T+1}, s{S_T}, 1
    s_add_u32 s{S_T+1}, s{S_T+1}, s{S_EP+3}
    s_add_u32 s{S_T+1}, s{S_T+1}, s{S_CG}
    s_add_u32 s{S_T+1}, s{S_T+1}, 1
    s_lshl_b32 s{S_T+1}, s{S_T+1}, 11
    s_add_u32 s{S_EP+5}, s{S_T+1}, s{S_EP+2}
    s_lshl_b32 s{S_T}, s{S_T}, 22
    s_add_u32 s{S_T}, s{S_T}, {QF_OFF}
    """)
    head_dest(S_EP+6, f"s{S_T}", 16)
    h_store(2, S_EP+5, 0)
    h_store(6, S_EP+5, 1024)
    a(f"s_cmp_eq_u32 s{S_CL}, 3")
    a("s_cbranch_scc1 L_g1_eAV")
    a(f"s_cmp_eq_u32 s{S_CL}, 1")
    a(f"s_cselect_b32 s{S_T+4}, s{S_T+4}, 1.0")
    a(f"s_mov_b32 s{S_T+5}, s{S_T+4}")
    qk_store(0, 1, True, S_EP+6)
    a("s_branch L_g1_fin")
    a("L_g1_eAV:")
    v_store(0, 1, S_EP+6)
    a("s_branch L_g1_fin")
    a("L_g1_eB:")
    a(f"""
    s_lshl_b32 s{S_T+1}, s{S_EP+3}, 1
    s_add_u32 s{S_T+1}, s{S_T+1}, s{S_CG}
    s_lshl_b32 s{S_T+1}, s{S_T+1}, 10
    s_add_u32 s{S_EP+5}, s{S_T+1}, s{S_EP+2}
    """)
    head_dest(S_EP+6, VF_OFF, 0)
    v_store(0, 1, S_EP+6)
    head_dest(S_EP+7, QF_OFF, 0)
    qk_store(2, 4, True, S_EP+7)
    head_dest(S_EP+6, KF_OFF, 0)
    qk_store(3, 5, False, S_EP+6)
    h_store(6, S_EP+5, 0)
    a("L_g1_fin:")
    if PROF:
        a("s_waitcnt vmcnt(0)")
        stamp(a, 3)
        prof_store(a)
    a("L_g1_end:")
    a("s_endpgm")
    return a.text()
```

```python
S = 2048; D = 1024; F = 3584; H = 32; DH = 32
XN_OFF = 0x0000000
QF_OFF = 0x0400000
KF_OFF = 0x0800000
VF_OFF = 0x0C00000
HF_OFF = 0x1000000
OF_OFF = 0x2000000
WT_OFF = 0x2400000
WT_TILE = 4608 * 128
PX_OFF = XN_OFF
WS_USED = 0x2E00000
PROF_OFF = 0x3800000
KA_X, KA_WQKV, KA_WO, KA_BX, KA_WG, KA_WU, KA_WD, KA_OUT, KA_DBG, KA_WS = [8*i for i in range(10)]
QSCALE = (32 ** -0.5) * 1.4426950408889634
```

```python
from asmlib import *
from layout import *
import struct
import k_final3

NAME = "attn_final_kernel"
RING = 65536
FLAG = 131072
MXCH = RING + 64
LXCH = MXCH + 4096
LDS = 163840
DELTA = 108.0
LMAX = 2.0 ** 120

QA, QB = 8, 16
KF_, VF_ = 24, 32
SEL = 40
PA, PB = 44, 52
LA, LB = 60, 64
SA, SB = 68, 84
MA, MB = 100, 116
OA, OB = 132, 148
KP = 164
VADDR = 228
MXA, MXB = 229, 230
L16 = 231
VCD, VCO, VCB = 232, 233, 234
CA, CB = 236, 240
NVGPR = 244

SRD_MY, SRD_WS = 8, 16
S_W, S_HEAD, S_QB, S_MODE = 20, 21, 22, 23
S_SOFF, S_M0, S_CNT, S_HF = 24, 25, 26, 27
S_T = 28
S_KB = 36
S_P = 37
S_SOFF0 = 38
SRD_CA, SRD_CB = 40, 44
S_SA, S_SB, S_DA, S_DB = 48, 49, 50, 51
S_N1, S_N2 = 52, 56
S_PWO, S_PWD = 60, 62
S_FLW = 64
S_PX, S_PO = 96, 98
OOB = 0x7fff0000
COPY = True
CFLAGS = " sc0 sc1"
OFLAGS = " sc0 sc1"

def f32hex(x):
    return "0x%08x" % struct.unpack("<I", struct.pack("<f", x))[0]

PROF = False
PAD = 0
NORS = False
def stamp(a, i):
    if PROF:
        a(f"s_memtime s[{70+4*i}:{71+4*i}]")
        a(f"s_memrealtime s[{72+4*i}:{73+4*i}]")

def prof_store(a):
    if not PROF: return
    a(f"""
    s_waitcnt lgkmcnt(0)
    s_lshl_b32 s{S_T}, s2, 3
    s_add_u32 s{S_T}, s{S_T}, s{S_W}
    s_lshl_b32 s{S_T}, s{S_T}, 6
    s_add_u32 s{S_T}, s{S_T}, {PROF_OFF + 0x100000}
    s_mov_b32 s{SRD_WS+2}, 0x4000000
    """)
    for i in range(4):
        a(f"v_mov_b32 v{4+2*i}, s{70+4*i}")
        a(f"v_mov_b32 v{5+2*i}, s{72+4*i}")
    a(f"""
    v_mov_b32 v2, 0
    buffer_store_dwordx4 v[4:7], v2, {sr(SRD_WS,4)}, s{S_T} offen
    buffer_store_dwordx4 v[8:11], v2, {sr(SRD_WS,4)}, s{S_T} offen offset:16
    """)

def m32(d, A, B, C):
    return f"v_mfma_f32_32x32x16_bf16 {vr(d,16)}, {vr(A,4)}, {vr(B,4)}, {C}"
def m16(d, A, B):
    return f"v_mfma_f32_16x16x32_bf16 {vr(d,4)}, {vr(A,4)}, {vr(B,4)}, {vr(d,4)}"

def phase(a, x, kreads, vreads, extra, kwait, vwait):
    if x == 0: S, P, Sy, Py, Qy, My, Oy, Ly = SA, PA, SB, PB, QB, MB, OB, LB
    else:      S, P, Sy, Py, Qy, My, Oy, Ly = SB, PB, SA, PA, QA, MA, OA, LA
    E = [f"v_exp_f32 v{S+j}, v{S+j}" for j in range(16)]
    C = [f"v_cvt_pk_bf16_f32 v{P+k}, v{S+2*k}, v{S+2*k+1}" for k in range(8)]
    ex = list(extra)
    def X(n):
        out = ex[:n]; del ex[:n]; return out
    seq = []
    if kwait: seq.append(kwait)
    seq += [m32(Sy, KF_, Qy, vr(My,16)), E[0], E[1], E[2]] + X(2)
    if vwait: seq.append(vwait)
    seq += [m32(Oy, VF_, Py, vr(Oy,16)), E[3], C[0], E[4], E[5]] + X(2)
    seq += [m32(Sy, KF_+4, Qy+4, vr(Sy,16)), C[1], E[6]] + kreads + [E[7], E[8]] + X(2)
    seq += [m32(Oy, VF_+4, Py+4, vr(Oy,16)), C[2], C[3], E[9]] + vreads + [E[10]] + X(2)
    seq += [m16(Ly, SEL, Py), E[11], C[4], E[12]]
    seq += [m16(Ly, SEL, Py+4), E[13], C[5], E[14], E[15], C[6]] + X(99) + [C[7]]
    if PAD: seq.append(f"s_nop {PAD-1}")
    if NORS: seq = [s for s in seq if "16x16x32" not in s]
    for s in seq: a(s)

def max_tiles(a, kregs):
    bufa, bufb = [SA, MA], [SB, MB]
    def mx(dst, buf, lo):
        return [f"v_max3_f32 v{dst}, v{buf+2*k}, v{buf+2*k+1}, v{dst}" for k in range(lo, lo+4)]
    n = len(kregs)
    for i in range(n + 1):
        if i < n:
            k = kregs[i]
            mm = [m32(bufa[i&1], k, QA, "0"), m32(bufa[i&1], k+4, QA+4, vr(bufa[i&1],16)),
                  m32(bufb[i&1], k, QB, "0"), m32(bufb[i&1], k+4, QB+4, vr(bufb[i&1],16))]
        else:
            mm = ["s_nop 7", "s_nop 3", "s_nop 7", "s_nop 3"]
        pv = [[], [], [], []]
        if i > 0:
            j = (i-1) & 1
            pv = [mx(MXA, bufa[j], 0), mx(MXA, bufa[j], 4), mx(MXB, bufb[j], 0), mx(MXB, bufb[j], 4)]
        for m, f in zip(mm, pv):
            a(m)
            for s in f: a(s)

def half_max(a):
    for mxr in (MXA, MXB):
        a(f"""
        v_mov_b32 v2, v{mxr}
        s_nop 1
        v_permlane32_swap_b32 v{mxr}, v2
        s_nop 1
        v_max_f32 v{mxr}, v{mxr}, v2
        """)

def set_negm(a, delta):
    for mxr, M in ((MXA, MA), (MXB, MB)):
        a(f"v_sub_f32 v2, {f32hex(-delta) if delta else 0}, v{mxr}")
        for j in range(16):
            a(f"v_mov_b32 v{M+j}, v2")

def dma():
    return [f"buffer_load_dwordx4 v{L16}, {sr(SRD_MY,4)}, s{S_SOFF} offen lds",
            f"buffer_load_dwordx4 v{L16}, {sr(SRD_MY,4)}, s{S_SOFF} offen offset:1024 lds",
            f"s_add_u32 s{S_SOFF}, s{S_SOFF}, 4096"]

def copy_ops(j, peeled):
    if not COPY or peeled: return []
    ld = lambda r, srd, so: f"buffer_load_dwordx4 {vr(r,4)}, v{L16}, {sr(srd,4)}, s{so} offen"
    st = lambda r, v, so: f"buffer_store_dwordx4 {vr(r,4)}, v{v}, {sr(SRD_WS,4)}, s{so} offen{CFLAGS}"
    k = j & 3
    if k == 0: return ["s_waitcnt vmcnt(8)", st(CA, VCD, S_DA)]
    if k == 1: return [ld(CA, SRD_CA, S_SA)]
    if k == 2:
        return ["s_waitcnt vmcnt(8)", st(CB, VCB, S_DB),
                f"s_cmp_eq_u32 s{S_CNT}, 2",
                f"s_cselect_b32 s{SRD_CB}, s{S_PWO}, s{SRD_CB}",
                f"s_cselect_b32 s{SRD_CB+1}, s{S_PWO+1}, s{SRD_CB+1}",
                f"s_cselect_b32 s{SRD_CB+2}, {D*D*2}, s{SRD_CB+2}",
                "s_cselect_b64 vcc, -1, 0",
                f"v_cndmask_b32 v{VCB}, v{VCB}, v{VCO}, vcc"]
    r = [ld(CB, SRD_CB, S_SB)]
    for i in range(4): r.append(f"s_mov_b32 s{S_SA+i}, s{S_N1+i}")
    for i in range(4): r.append(f"s_mov_b32 s{S_N1+i}, s{S_N2+i}")
    return r

def copy_setup(a):
    if not COPY: return
    T = S_T
    a(f"""
    v_lshrrev_b32 v3, 3, v1
    v_and_b32 v4, 7, v1
    v_mul_u32_u24 v3, {WT_TILE}, v3
    v_lshl_add_u32 v{VCD}, v4, 4, v3
    v_mov_b32 v{VCB}, v{VCD}
    v_lshrrev_b32 v3, 4, v1
    v_bfe_u32 v4, v1, 2, 1
    v_lshl_add_u32 v3, v3, 1, v4
    v_mul_u32_u24 v3, {WT_TILE}, v3
    v_bfe_u32 v4, v1, 3, 1
    v_and_b32 v5, 3, v1
    v_lshl_add_u32 v4, v4, 2, v5
    v_lshl_add_u32 v{VCO}, v4, 4, v3
    s_lshr_b32 s{T}, s{S_W}, 1
    s_and_b32 s{T+1}, s{S_W}, 1
    s_mul_i32 s{T+2}, s2, 14
    s_add_u32 s{T+2}, s{T+2}, s{T}
    s_lshl_b32 s{T+3}, s2, 2
    s_add_u32 s{T+3}, s{T+3}, s{T}
    s_lshl_b32 s{T+4}, s{T+1}, 10
    s_mul_i32 s{T+5}, s{T+1}, {8*WT_TILE}
    s_add_u32 s{T+5}, s{T+5}, {WT_OFF}
    s_lshl_b32 s{S_SB}, s{T+2}, 11
    s_add_u32 s{S_SB}, s{S_SB}, s{T+4}
    s_mov_b32 s{SRD_CA}, s{S_PWD}
    s_mov_b32 s{SRD_CA+1}, s{S_PWD+1}
    s_mov_b32 s{SRD_CA+2}, {F*D*2}
    s_mov_b32 s{SRD_CA+3}, 0x20000
    s_mov_b32 s{SRD_CB}, s{S_PWD}
    s_mov_b32 s{SRD_CB+1}, s{S_PWD+1}
    s_mov_b32 s{SRD_CB+2}, {F*D*2}
    s_mov_b32 s{SRD_CB+3}, 0x20000
    v_mov_b32 v{CA}, -1
    v_mov_b32 v{CA+1}, -1
    v_mov_b32 v{CA+2}, -1
    v_mov_b32 v{CA+3}, -1
    s_lshl_b32 s{T+6}, s2, 14
    s_lshl_b32 s{T+7}, s{S_W}, 11
    s_add_u32 s{T+6}, s{T+6}, s{T+7}
    s_add_u32 s{T+6}, s{T+6}, {PX_OFF}
    buffer_store_dwordx4 {vr(CA,4)}, v{L16}, {sr(SRD_WS,4)}, s{T+6} offen sc0 sc1
    buffer_store_dwordx4 {vr(CA,4)}, v{L16}, {sr(SRD_WS,4)}, s{T+6} offen offset:1024 sc0 sc1
    buffer_load_dwordx4 {vr(CB,4)}, v{L16}, {sr(SRD_CB,4)}, s{S_SB} offen
    s_lshl_b32 s{T+6}, s{T+2}, 7
    s_add_u32 s{T+6}, s{T+6}, s{T+5}
    s_cmp_ge_u32 s{S_W}, 4
    s_cselect_b32 s{T+7}, {OOB}, 0
    s_add_u32 s{S_SA}, s{S_SB}, {4*2048}
    s_add_u32 s{S_N1}, s{S_SB}, {12*2048}
    s_or_b32 s{S_N1}, s{S_N1}, s{T+7}
    s_add_u32 s{S_SB}, s{S_SB}, {8*2048}
    s_mov_b32 s{S_DA}, {OOB}
    s_mov_b32 s{S_DB}, s{T+6}
    s_lshl_b32 s{S_N1+1}, s{T+3}, 11
    s_add_u32 s{S_N1+1}, s{S_N1+1}, s{T+4}
    s_add_u32 s{S_N1+2}, s{T+6}, {4*128}
    s_add_u32 s{S_N1+3}, s{T+6}, {8*128}
    s_mov_b32 s{S_N2}, {OOB}
    s_mov_b32 s{S_N2+1}, {OOB}
    s_add_u32 s{S_N2+2}, s{T+6}, {12*128}
    s_or_b32 s{S_N2+2}, s{S_N2+2}, s{T+7}
    s_add_u32 s{T+3}, s{T+3}, {F}
    s_lshl_b32 s{S_N2+3}, s{T+3}, 7
    s_add_u32 s{S_N2+3}, s{S_N2+3}, s{T+5}
    s_lshl_b32 s{S_FLW}, s2, 2
    s_add_u32 s{S_FLW}, s{S_FLW}, {FLW_OFF}
    s_cmp_eq_u32 s{S_W}, 0
    s_cselect_b32 s{S_FLW}, s{S_FLW}, {OOB}
    """)

def stage(a, j, do_dma, vm, last_in_loop=False, peeled=False, head=()):
    slot = j & 3
    a(f"s_waitcnt vmcnt({vm})")
    a("s_barrier")
    for x in head: a(x)
    D = dma()
    for u in range(2):
        base = slot*16384 + u*4096
        kr = [f"ds_read_b128 {vr(KF_+4*f,4)}, v{VADDR} offset:{base+f*1024}" for f in range(2)]
        vrd = [f"ds_read_b128 {vr(VF_+4*f,4)}, v{VADDR} offset:{base+2048+f*1024}" for f in range(2)]
        ex1, ex2 = [], []
        if u == 0 and do_dma:
            ex1 = [f"s_add_u32 m0, s{S_M0}, {((j+3)&3)*16384}", "s_nop 0", D[0]]
            ex2 = [D[1], D[2]]
        if u == 1: ex1 = copy_ops(j, peeled)
        if u == 1 and last_in_loop:
            ex2 = [f"s_sub_u32 s{S_CNT}, s{S_CNT}, 1", f"s_cmp_lg_u32 s{S_CNT}, 0"]
        phase(a, 0, kr, vrd, ex1, None, None)
        phase(a, 1, [], [], ex2, "s_waitcnt lgkmcnt(2)", "s_waitcnt lgkmcnt(0)")

def gen():
    a = Asm()
    a(f"""
    s_cmp_ge_u32 s2, 256
    s_cbranch_scc1 L_at_end
    """)
    stamp(a, 0)
    a(f"""
    s_load_dwordx2 s[4:5], s[0:1], {KA_WS}
    s_load_dwordx2 s[{S_PWO}:{S_PWO+1}], s[0:1], {KA_WO}
    s_load_dwordx2 s[{S_PWD}:{S_PWD+1}], s[0:1], {KA_WD}
    s_load_dwordx2 s[{S_PX}:{S_PX+1}], s[0:1], {KA_X}
    s_load_dwordx2 s[{S_PO}:{S_PO+1}], s[0:1], {KA_OUT}
    v_lshrrev_b32 v2, 6, v0
    v_and_b32 v1, 63, v0
    s_and_b32 s{S_T}, s2, 7
    s_bfe_u32 s{S_T+1}, s2, 0x20003
    s_lshl_b32 s{S_HEAD}, s{S_T}, 2
    s_add_u32 s{S_HEAD}, s{S_HEAD}, s{S_T+1}
    s_lshr_b32 s{S_QB}, s2, 5
    v_readfirstlane_b32 s{S_W}, v2
    v_lshlrev_b32 v{L16}, 4, v1
    s_lshl_b32 s{S_KB}, s{S_HEAD}, 17
    s_mov_b32 s{S_MODE}, 0
    s_and_b32 s{S_P}, s{S_W}, 3
    s_lshr_b32 s{S_HF}, s{S_W}, 2
    s_lshl_b32 s{S_T}, s{S_QB}, 3
    s_lshl_b32 s{S_T+1}, s{S_P}, 1
    s_add_u32 s{S_T}, s{S_T}, s{S_T+1}
    s_lshl_b32 s{S_T+2}, s{S_T}, 11
    s_add_u32 s{S_T+2}, s{S_T+2}, s{S_KB}
    s_add_u32 s{S_T+2}, s{S_T+2}, {QF_OFF}
    s_lshl_b32 s{S_T+5}, s{S_HF}, 16
    s_add_u32 s{S_T+5}, s{S_T+5}, s{S_KB}
    s_and_b32 s{S_T+6}, s{S_P}, 1
    s_cmp_eq_u32 s{S_T+6}, 0
    s_cselect_b32 s{S_T+3}, 0, {VF_OFF - KF_OFF - 2048}
    s_cselect_b32 s{S_T+4}, s{S_HF}, 0
    s_add_u32 s{S_T+3}, s{S_T+3}, {KF_OFF + 2048}
    s_add_u32 s{S_T+3}, s{S_T+3}, s{S_T+5}
    s_lshl_b32 s{S_T+4}, s{S_T+4}, 11
    s_sub_u32 s{S_T+4}, 65536, s{S_T+4}
    s_lshr_b32 s{S_T}, s{S_P}, 1
    s_lshl_b32 s{S_SOFF0}, s{S_T}, 11
    s_lshl_b32 s{S_M0}, s{S_T}, 12
    s_lshl_b32 s{S_T+6}, s{S_T+6}, 11
    s_add_u32 s{S_M0}, s{S_M0}, s{S_T+6}
    s_lshl_b32 s{S_T}, s{S_HF}, 13
    s_add_u32 s{S_M0}, s{S_M0}, s{S_T}
    v_add_u32 v{VADDR}, s{S_T}, v{L16}
    s_add_u32 s{S_KB}, s{S_T+5}, {KF_OFF}
    s_waitcnt lgkmcnt(0)
    s_mov_b32 s{SRD_WS}, s4
    s_mov_b32 s{SRD_WS+1}, s5
    s_mov_b32 s{SRD_WS+2}, {WS_USED}
    s_mov_b32 s{SRD_WS+3}, 0x20000
    s_add_u32 s{SRD_MY}, s4, s{S_T+3}
    s_addc_u32 s{SRD_MY+1}, s5, 0
    s_mov_b32 s{SRD_MY+2}, s{S_T+4}
    s_mov_b32 s{SRD_MY+3}, 0x20000
    """)
    for t in range(2):
        for f in range(2):
            a(f"buffer_load_dwordx4 {vr(QA+8*t+4*f,4)}, v{L16}, {sr(SRD_WS,4)}, s{S_T+2} offen offset:{t*2048+f*1024}")
    a("L_at_restart:")
    a(f"s_mov_b32 s{S_SOFF}, s{S_SOFF0}")
    D = dma()
    for st in range(2):
        a(f"s_add_u32 m0, s{S_M0}, {st*16384}")
        a("s_nop 0")
        for d in D: a(d)
    for f in range(2):
        a(f"buffer_load_dwordx4 {vr(KF_+4*f,4)}, v{L16}, {sr(SRD_WS,4)}, s{S_KB} offen offset:{f*1024}")
    a(f"s_add_u32 m0, s{S_M0}, {2*16384}")
    a("s_nop 0")
    for d in D: a(d)
    copy_setup(a)
    c1 = 3 if COPY else 0
    a(f"""
    v_mov_b32 v2, 0
    v_mov_b32 v3, {FLAG}
    ds_write_b32 v3, v2
    v_bfe_u32 v4, v1, 4, 1
    v_bfe_u32 v5, v1, 2, 1
    v_cmp_eq_u32 vcc, v4, v5
    v_mov_b32 v6, 0x3f803f80
    s_nop 0
    v_cndmask_b32 v{SEL}, 0, v6, vcc
    """)
    for j in range(1, 4): a(f"v_mov_b32 v{SEL+j}, v{SEL}")
    for r, n in ((VF_, 8), (PB, 8), (LA, 4), (LB, 4), (OA, 16), (OB, 16)):
        for j in range(n): a(f"v_mov_b32 v{r+j}, 0")
    a(f"""
    s_waitcnt vmcnt({4+c1}) lgkmcnt(0)
    s_barrier
    s_cmp_eq_u32 s{S_MODE}, 0
    s_cbranch_scc0 L_at_havem
    """)
    for i in range(4):
        for f in range(2):
            a(f"ds_read_b128 {vr(KP+8*i+4*f,4)}, v{VADDR} offset:{(i>>1)*16384 + (i&1)*4096 + f*1024}")
    a(f"v_mov_b32 v{MXA}, 0xff800000")
    a(f"v_mov_b32 v{MXB}, 0xff800000")
    a("s_waitcnt lgkmcnt(0)")
    max_tiles(a, [KP+8*i for i in range(4)])
    half_max(a)
    a(f"""
    v_lshlrev_b32 v3, 2, v1
    s_lshl_b32 s{S_T}, s{S_W}, 9
    s_xor_b32 s{S_T+1}, s{S_T}, 2048
    s_add_u32 s{S_T}, s{S_T}, {MXCH}
    s_add_u32 s{S_T+1}, s{S_T+1}, {MXCH}
    v_add_u32 v4, s{S_T}, v3
    v_add_u32 v5, s{S_T+1}, v3
    ds_write_b32 v4, v{MXA}
    ds_write_b32 v4, v{MXB} offset:256
    s_waitcnt lgkmcnt(0)
    s_barrier
    ds_read_b32 v6, v5
    ds_read_b32 v7, v5 offset:256
    s_waitcnt lgkmcnt(0)
    v_max_f32 v{MXA}, v{MXA}, v6
    v_max_f32 v{MXB}, v{MXB}, v7
    """)
    set_negm(a, DELTA)
    a("L_at_havem:")
    a(f"s_waitcnt vmcnt({2+c1})")
    a(m32(SA, KF_, QA, vr(MA,16)))
    a(m32(SA, KF_+4, QA+4, vr(SA,16)))
    a(f"s_mov_b32 s{S_CNT}, 3")
    a("s_nop 7")
    a("s_nop 3")
    stamp(a, 1)
    a(".p2align 6")
    a("L_at_loop:")
    for j in range(4):
        stage(a, j, True, 7 if COPY else 4, last_in_loop=(j == 3))
    a("s_cbranch_scc1 L_at_loop")
    flagw = [f"v_mov_b32 v2, 0", f"v_mov_b32 v3, 1",
             f"buffer_store_dword v3, v2, {sr(SRD_WS,4)}, s{S_FLW} offen sc0 sc1"]
    pollw = [f"buffer_load_dwordx4 {vr(CA,4)}, v{L16}, {sr(SRD_WS,4)}, s{S_T} offen"]
    stage(a, 12, True, 7 if COPY else 4, peeled=True)
    stage(a, 13, False, 5 if COPY else 4, peeled=True, head=flagw)
    stage(a, 14, False, 4, peeled=True)
    stage(a, 15, False, 1, peeled=True, head=[f"s_mov_b32 s{S_T}, {FLW_OFF}"] + pollw)
    stamp(a, 2)
    a(m32(OB, VF_, PB, vr(OB,16)))
    a(m16(LB, SEL, PB))
    a(m32(OB, VF_+4, PB+4, vr(OB,16)))
    a(m16(LB, SEL, PB+4))
    a(f"""
    s_lshl_b32 s{S_T}, s{S_W}, 12
    s_xor_b32 s{S_T+1}, s{S_T}, 16384
    v_add_u32 v4, s{S_T}, v{L16}
    v_add_u32 v5, s{S_T+1}, v{L16}
    v_lshlrev_b32 v3, 2, v1
    s_lshl_b32 s{S_T}, s{S_W}, 8
    s_xor_b32 s{S_T+1}, s{S_T}, 1024
    s_add_u32 s{S_T}, s{S_T}, {LXCH}
    s_add_u32 s{S_T+1}, s{S_T+1}, {LXCH}
    v_add_u32 v6, s{S_T}, v3
    v_add_u32 v7, s{S_T+1}, v3
    v_and_b32 v2, 15, v1
    v_lshlrev_b32 v2, 4, v2
    v_lshrrev_b32 v3, 5, v1
    v_lshl_add_u32 v2, v3, 8, v2
    v_bfe_u32 v3, v1, 4, 1
    v_lshl_add_u32 v2, v3, 15, v2
    s_lshl_b32 s{S_T}, s{S_QB}, 3
    s_lshl_b32 s{S_T+1}, s{S_P}, 1
    s_add_u32 s{S_T}, s{S_T}, s{S_T+1}
    s_add_u32 s{S_T}, s{S_T}, s{S_HF}
    s_lshl_b32 s{S_T}, s{S_T}, 16
    s_lshl_b32 s{S_T+1}, s{S_HEAD}, 10
    s_add_u32 s{S_T}, s{S_T}, s{S_T+1}
    s_add_u32 s{S_T}, s{S_T}, {OF_OFF}
    s_mov_b32 s{S_T+2}, {f32hex(LMAX)}
    s_cmp_eq_u32 s{S_HF}, 0
    s_cbranch_scc0 L_at_x1
    """)
    def xch(send_o, send_l, keep_o, keep_l):
        for k in range(4):
            a(f"ds_write_b128 v4, {vr(send_o+4*k,4)} offset:{k*1024}")
        a(f"ds_write_b32 v6, v{send_l}")
        a("s_waitcnt lgkmcnt(0)")
        a("s_barrier")
        for k in range(4):
            a(f"ds_read_b128 {vr(SA+4*k,4)}, v5 offset:{k*1024}")
        a(f"ds_read_b32 v{KP}, v7")
        a("s_waitcnt lgkmcnt(0)")
        a(f"v_add_f32 v{KP}, v{KP}, v{keep_l}")
        a(f"v_rcp_f32 v{KP+2}, v{KP}")
        a(f"v_cmp_nle_f32 vcc, v{KP}, s{S_T+2}")
        for j in range(16):
            a(f"v_add_f32 v{SA+j}, v{SA+j}, v{keep_o+j}")
        a("s_branch L_at_xdone" if keep_o == OA else "")
    a("s_nop 7")
    xch(OB, LB, OA, LA)
    a("L_at_x1:")
    xch(OA, LA, OB, LB)
    a("L_at_xdone:")
    for k in range(8):
        a(f"v_pk_mul_f32 {vr(SA+2*k,2)}, {vr(SA+2*k,2)}, {vr(KP+2,2)} op_sel_hi:[1,0]")
    order = [0, 1, 4, 5, 2, 3, 6, 7]
    for i, k in enumerate(order):
        a(f"v_cvt_pk_bf16_f32 v{SB+i}, v{SA+2*k}, v{SA+2*k+1}")
    a(f"buffer_store_dwordx4 {vr(SB,4)}, v2, {sr(SRD_WS,4)}, s{S_T} offen{OFLAGS}")
    a(f"buffer_store_dwordx4 {vr(SB+4,4)}, v2, {sr(SRD_WS,4)}, s{S_T} offen offset:512{OFLAGS}")
    a(f"""
    s_cmp_eq_u32 s{S_MODE}, 0
    s_cbranch_scc0 L_at_fin2
    s_cmp_eq_u64 vcc, 0
    s_cbranch_scc1 L_at_noflag
    v_mov_b32 v4, 1
    v_mov_b32 v3, {FLAG}
    ds_write_b32 v3, v4
L_at_noflag:
    s_waitcnt lgkmcnt(0)
    s_barrier
    v_mov_b32 v3, {FLAG}
    ds_read_b32 v4, v3
    s_waitcnt lgkmcnt(0)
    v_readfirstlane_b32 s{S_T}, v4
    s_cmp_eq_u32 s{S_T}, 0
    s_cbranch_scc1 L_at_fin
    s_mov_b32 s{S_MODE}, 1
    v_mov_b32 v{MXA}, 0xff800000
    v_mov_b32 v{MXB}, 0xff800000
    s_lshl_b32 s{S_T}, s{S_HEAD}, 17
    s_add_u32 s{S_T}, s{S_T}, {KF_OFF}
    s_mov_b32 s{S_CNT}, 8
L_at_fb:
    """)
    for i in range(8):
        if i and i % 2 == 0: a(f"s_add_u32 s{S_T}, s{S_T}, 4096")
        for f in range(2):
            a(f"buffer_load_dwordx4 {vr(KP+8*i+4*f,4)}, v{L16}, {sr(SRD_WS,4)}, s{S_T} offen offset:{(i&1)*2048+f*1024}")
    a(f"s_add_u32 s{S_T}, s{S_T}, 4096")
    a("s_waitcnt vmcnt(0)")
    max_tiles(a, [KP+8*i for i in range(8)])
    a(f"""
    s_sub_u32 s{S_CNT}, s{S_CNT}, 1
    s_cmp_lg_u32 s{S_CNT}, 0
    s_cbranch_scc1 L_at_fb
    """)
    half_max(a)
    set_negm(a, 0)
    a("s_waitcnt vmcnt(0)")
    a("s_barrier")
    a("s_branch L_at_restart")
    a("L_at_fin2:")
    a("s_barrier")
    a("L_at_fin:")
    if PROF:
        stamp(a, 3)
        prof_store(a)
        a(f"s_mov_b32 s{SRD_WS+2}, {WS_USED}")
    return a.text() + k_final3.gen(tail_label="L_at_end")
```

```python
from asmlib import *
from layout import *
import struct

NAME = "final_kernel"
NS = 5
SLOT = 32768
XO = 16384
LDS = NS * SLOT
NFF, NSS = 28, 16
NST = NFF + NSS
TA, TS, XA = 10, 22, 28
VX0, VX1, VWA, L16, VXO, VCHK = 31, 32, 33, 34, 35, 36
VTL = 216
VX2 = 35
WB = (40, 56)
XB = (72, 88)
ACF, ACS, XIN = 104, 168, 200
NVGPR = 220
SRD_X, SRD_IN, SRD_OUT = 12, 16, 20
S_W, S_MT, S_NP, S_HF, S_CNT = 24, 25, 26, 27, 28
S_SW, S_SX, S_M0W, S_M0X = 30, 32, 34, 35
S_OX, S_SW2, S_M0W2 = 36, 37, 38
S_XO = 40
S_PS, S_PL = 44, 45
S_ONE, S_NL2E = 46, 48
S_MASK = 50
S_T = 52
S_POLL = 60
S_FLO = 61
P_WS, P_X, P_OUT = 4, 100, 96
V_FLW = 236
VFO = 36
O_POLL, O_CHECK = 14, 20
POLL_MAX = 1 << 16

def f32hex(x):
    return "0x%08x" % struct.unpack("<I", struct.pack("<f", x))[0]

PROF = False
EXP = ""
H_STORE = [0, 0, 1, 1]
H_LOAD = [11, 11, 11, 11]
H_CHECK = 16
H_SILU = 16
H_SEND = 31
STFL = " sc0 sc1"
LDFL = " sc1"

def stamp(a, i):
    if PROF:
        a(f"s_memtime s[{70+4*i}:{71+4*i}]")
        a(f"s_memrealtime s[{72+4*i}:{73+4*i}]")
def xstamp(i):
    return [f"s_memtime s[{86+2*i}:{87+2*i}]"] if PROF else []
def prof_store(a):
    if not PROF: return
    a(f"""
    s_waitcnt lgkmcnt(0)
    s_lshl_b32 s{S_T}, s2, 3
    s_add_u32 s{S_T}, s{S_T}, s{S_W}
    s_lshl_b32 s{S_T}, s{S_T}, 6
    s_add_u32 s{S_T}, s{S_T}, {PROF_OFF + 0x200000}
    s_mov_b32 s{SRD_X+2}, 0x4000000
    """)
    for i in range(4):
        a(f"v_mov_b32 v{4+2*i}, s{70+4*i}")
        a(f"v_mov_b32 v{5+2*i}, s{72+4*i}")
    for i in range(4):
        a(f"v_mov_b32 v{12+i}, s{86+2*i}")
    a(f"""
    v_mov_b32 v16, s{S_POLL}
    v_mov_b32 v17, 0
    v_mov_b32 v2, 0
    buffer_store_dwordx4 v[4:7], v2, {sr(SRD_X,4)}, s{S_T} offen
    buffer_store_dwordx4 v[8:11], v2, {sr(SRD_X,4)}, s{S_T} offen offset:16
    buffer_store_dwordx4 v[12:15], v2, {sr(SRD_X,4)}, s{S_T} offen offset:32
    buffer_store_dwordx2 v[16:17], v2, {sr(SRD_X,4)}, s{S_T} offen offset:48
    """)

def acf(t, b): return ACF + (t*4 + b)*4
def acs(t, b): return ACS + (t*2 + b)*4

def mfmas(stage, k):
    wb, xb = WB[k], XB[k]
    if stage < NFF:
        z = stage == 0 and k == 0
        return [f"v_mfma_f32_16x16x32_bf16 {vr(acf(t,b),4)}, {vr(wb+4*b,4)}, {vr(xb+4*t,4)}, "
                + ("0" if z else vr(acf(t,b),4)) for b in (2, 3, 0, 1) for t in range(4)]
    z = stage == NFF and k == 0
    return [f"v_mfma_f32_16x16x32_bf16 {vr(acs(t,b),4)}, {vr(wb+4*b,4)}, {vr(xb+4*t,4)}, "
            + ("0" if z else vr(acs(t,b),4)) for b in range(2) for t in range(4)]

def reads(stage, k):
    wb, xb = WB[k], XB[k]
    slot = stage % NS
    st, lo = slot >> 1, (slot & 1)*SLOT
    r = [f"ds_read_b128 {vr(xb+4*t,4)}, v{XA+st} offset:{lo + (2*t+k)*1024}" for t in range(4)]
    if stage < NFF:
        r += [f"ds_read_b64_tr_b16 {vr(wb+4*b+2*x,2)}, v{TA+4*st+b} offset:{lo + k*4096 + x*2048}"
              for b in (2, 3, 0, 1) for x in range(2)]
    else:
        r += [f"ds_read_b64_tr_b16 {vr(wb+4*b+2*x,2)}, v{TS+2*st+b} offset:{lo + k*4096 + x*2048}"
              for b in range(2) for x in range(2)]
    if "nords" in EXP: r = ["s_nop 0"] * len(r)
    return r

def half(a, m, r, extra=()):
    r = list(r); ex = list(extra)
    n = len(m)
    nslots = (len(r) + 1) // 2
    per = -(-len(ex) // max(1, n - nslots)) if ex else 0
    for i in range(n):
        a(m[i])
        if r:
            a(r.pop(0))
            if r: a(r.pop(0))
        elif ex:
            for x in ex[:per]: a(x)
            del ex[:per]
    for x in ex: a(x)
    a("s_waitcnt lgkmcnt(0)")

def silu_block(t, b):
    d, r, T = acf(t, b), acf(t, 3) + 2*b, acf(t, 2)
    one, c = sr(S_ONE, 2), sr(S_NL2E, 2)
    o = []
    for h in range(2):
        o += [f"v_lshlrev_b32 v{T+2*h}, 16, v{r+h}", f"v_and_b32 v{T+2*h+1}, s{S_MASK}, v{r+h}"]
    o += [f"v_pk_add_f32 {vr(d+2*h,2)}, {vr(d+2*h,2)}, {vr(T+2*h,2)}" for h in range(2)]
    o += [f"v_pk_mul_f32 {vr(T+2*h,2)}, {vr(d+2*h,2)}, {c}" for h in range(2)]
    o += [f"v_exp_f32 v{T+j}, v{T+j}" for j in range(4)]
    o += [f"v_pk_add_f32 {vr(T+2*h,2)}, {vr(T+2*h,2)}, {one}" for h in range(2)]
    o += [f"v_rcp_f32 v{T+j}, v{T+j}" for j in range(4)]
    o += [f"v_pk_mul_f32 {vr(d+2*h,2)}, {vr(d+2*h,2)}, {vr(T+2*h,2)}" for h in range(2)]
    return o

def pack_store(t):
    p, q = acf(t, 2), acf(t, 3)
    return [f"v_cvt_pk_bf16_f32 v{p}, v{p}, v{p+1}", f"v_cvt_pk_bf16_f32 v{p+1}, v{p+2}, v{p+3}",
            f"v_cvt_pk_bf16_f32 v{p+2}, v{q}, v{q+1}", f"v_cvt_pk_bf16_f32 v{p+3}, v{q+2}, v{q+3}",
            f"buffer_store_dwordx4 {vr(p,4)}, v{L16}, {sr(SRD_X,4)}, s{S_PS} offen offset:{t*1024}" + STFL]

def recv(t, fl):
    return f"buffer_load_dwordx4 {vr(acf(t,3),4)}, v{L16}, {sr(SRD_X,4)}, s{S_PL} offen offset:{t*1024}" + fl

MAPQ = True
def mapping():
    if not MAPQ:
        return f"""
    s_and_b32 s{S_HF}, s2, 1
    s_bfe_u32 s{S_MT}, s2, 0x20001
    s_lshl_b32 s{S_MT}, s{S_MT}, 2
    s_bfe_u32 s{S_T}, s2, 0x20003
    s_add_u32 s{S_MT}, s{S_MT}, s{S_T}
    s_lshr_b32 s{S_NP}, s2, 5"""
    return f"""
    s_bfe_u32 s{S_HF}, s2, 0x10003
    s_bfe_u32 s{S_MT}, s2, 0x20001
    s_lshl_b32 s{S_MT}, s{S_MT}, 2
    s_bfe_u32 s{S_T}, s2, 0x20004
    s_add_u32 s{S_MT}, s{S_MT}, s{S_T}
    s_and_b32 s{S_NP}, s2, 1
    s_lshl_b32 s{S_NP}, s{S_NP}, 2
    s_lshr_b32 s{S_T}, s2, 6
    s_add_u32 s{S_NP}, s{S_NP}, s{S_T}"""

def wait_words(a, regs, reload_ops, stem):
    lab, ok = a.newlabel(stem + "_poll"), a.newlabel(stem + "_ok")
    a(f"{lab}:")
    r = regs[0]
    if len(regs) == 4:
        a(f"v_min_u32 v2, v{regs[0]}, v{regs[1]}")
        a(f"v_min3_u32 v2, v2, v{regs[2]}, v{regs[3]}")
        r = 2
    a(f"""
    v_cmp_eq_u32 vcc, 0, v{r}
    s_cbranch_vccz {ok}
    s_add_u32 s{S_POLL}, s{S_POLL}, 1
    s_cmp_lt_u32 s{S_POLL}, {POLL_MAX}
    s_cbranch_scc0 {ok}
    """)
    for x in reload_ops: a(x)
    a("s_waitcnt vmcnt(0)")
    a(f"s_branch {lab}")
    a(f"{ok}:")

def gen(tail_label):
    a = Asm()
    a.uid = 1000
    stamp(a, 0)
    a(f"""
    v_lshrrev_b32 v2, 6, v0
    v_and_b32 v1, 63, v0
    {mapping()}
    v_readfirstlane_b32 s{S_W}, v2
    v_lshlrev_b32 v{L16}, 4, v1
    s_mov_b32 s{S_POLL}, 0
    s_cmp_ge_u32 s{S_W}, 4
    s_cbranch_scc0 L_fi_compute
    """)
    if "same" in EXP:
        a(f"s_mov_b32 s{S_MT}, 0")
        a(f"s_mov_b32 s{S_NP}, 0")
    a(f"""
    s_sub_u32 s{S_W}, s{S_W}, 4
    v_and_b32 v4, 7, v1
    v_bfe_u32 v5, v1, 4, 2
    v_lshlrev_b32 v5, 1, v5
    v_xor_b32 v4, v4, v5
    v_lshlrev_b32 v4, 4, v4
    v_lshrrev_b32 v3, 3, v1
    v_lshl_add_u32 v{VWA}, v3, 7, v4
    v_mov_b32 v{VX0}, v{L16}
    v_add_u32 v{VX1}, {114688 - 2048}, v{L16}
    v_add_u32 v{VX2}, {32768 - 2048}, v{L16}
    s_lshl_b32 s{S_M0W}, s{S_W}, 12
    s_add_u32 s{S_M0X}, s{S_M0W}, {XO}
    s_lshl_b32 s{S_M0W2}, s{S_W}, 11
    s_lshl_b32 s{S_T}, s{S_MT}, 3
    s_lshl_b32 s{S_T+1}, s{S_W}, 1
    s_add_u32 s{S_T}, s{S_T}, s{S_T+1}
    s_mul_i32 s{S_SX}, s{S_T}, 114688
    s_mul_i32 s{S_T+1}, s{S_HF}, {NFF*2048}
    s_add_u32 s{S_SX}, s{S_SX}, s{S_T+1}
    s_add_u32 s{S_SX}, s{S_SX}, {HF_OFF - 2048}
    s_lshl_b32 s{S_OX}, s{S_T}, 15
    s_add_u32 s{S_OX}, s{S_OX}, {OF_OFF - 2048}
    s_lshl_b32 s{S_T}, s{S_NP}, 1
    s_lshr_b32 s{S_T+1}, s{S_W}, 1
    s_add_u32 s{S_T+1}, s{S_T+1}, s{S_T}
    s_mul_i32 s{S_SW}, s{S_T+1}, {WT_TILE}
    s_and_b32 s{S_T+1}, s{S_W}, 1
    s_lshl_b32 s{S_T+1}, s{S_T+1}, 12
    s_add_u32 s{S_SW}, s{S_SW}, s{S_T+1}
    s_mul_i32 s{S_T+1}, s{S_HF}, {NFF*8192}
    s_add_u32 s{S_SW}, s{S_SW}, s{S_T+1}
    s_add_u32 s{S_SW}, s{S_SW}, {WT_OFF}
    s_add_u32 s{S_T}, s{S_T}, s{S_HF}
    s_mul_i32 s{S_SW2}, s{S_T}, {WT_TILE}
    s_add_u32 s{S_SW2}, s{S_SW2}, s{S_M0W2}
    s_add_u32 s{S_SW2}, s{S_SW2}, {WT_OFF + F*128}
    s_mov_b32 m0, s{S_M0W}
    s_mov_b32 s{SRD_X}, s{P_WS}
    s_mov_b32 s{SRD_X+1}, s{P_WS+1}
    s_mov_b32 s{SRD_X+2}, {WS_USED}
    s_mov_b32 s{SRD_X+3}, 0x20000
    s_lshr_b32 s{S_FLO}, s{S_MT}, 1
    s_lshl_b32 s{S_FLO}, s{S_FLO}, 7
    s_add_u32 s{S_FLO}, s{S_FLO}, {FLO_OFF}
    v_and_b32 v3, 31, v1
    v_lshlrev_b32 v3, 2, v3
    s_mov_b32 s{S_T}, {FLW_OFF}
    s_waitcnt vmcnt(2)
    """)
    wait_words(a, [V_FLW + j for j in range(4)],
               [f"buffer_load_dwordx4 {vr(V_FLW,4)}, v{L16}, {sr(SRD_X,4)}, s{S_T} offen sc0 sc1"], "fi_w")
    def loads(slot, ff, tail, m0next):
        for i in range(4 if ff else 2):
            a(f"buffer_load_dwordx4 v{VWA}, {sr(SRD_X,4)}, s{S_SW} offen offset:{i*1024} lds")
            if i == 0: a(f"s_add_u32 s{S_SX}, s{S_SX}, 2048")
        a(f"s_add_u32 m0, s{S_M0X}, {slot*SLOT}")
        a(f"s_add_u32 s{S_SW}, s{S_SW}, 8192")
        v1 = VX1 if ff else VX2
        a(f"buffer_load_dwordx4 v{VX0}, {sr(SRD_X,4)}, s{S_SX} offen lds")
        a(f"buffer_load_dwordx4 v{VX0}, {sr(SRD_X,4)}, s{S_SX} offen offset:1024 lds")
        a(f"buffer_load_dwordx4 v{v1}, {sr(SRD_X,4)}, s{S_SX} offen offset:2048 lds")
        a(f"buffer_load_dwordx4 v{v1}, {sr(SRD_X,4)}, s{S_SX} offen offset:3072 lds")
        if m0next:
            a(f"s_add_u32 m0, s{S_M0W if ff else S_M0W2}, {((slot + 1) % NS) * SLOT}")
        for x in tail: a(x)
    for x in xstamp(0): a(x)
    for st in range(4):
        if "noprio" not in EXP: a(f"s_setprio {3 - st}")
        loads(st, True, ["s_nop 0"], True)
        if st == 0:
            for x in xstamp(1): a(x)
    if "lprio" in EXP: a("s_setprio 3")
    for x in xstamp(2): a(x)
    a(f"s_mov_b32 s{S_CNT}, 5")
    a("s_waitcnt vmcnt(24)")
    for x in xstamp(3): a(x)
    a("s_barrier")
    stamp(a, 1)
    count = [f"s_sub_u32 s{S_CNT}, s{S_CNT}, 1", f"s_cmp_eq_u32 s{S_CNT}, 0"]
    a("L_fi_lff:")
    for slot in (4, 0, 1, 2):
        loads(slot, True, (count if slot == 2 else []) + ["s_waitcnt vmcnt(24)", "s_barrier"], True)
    a("s_cbranch_scc1 L_fi_lffd")
    loads(3, True, ["s_waitcnt vmcnt(24)", "s_barrier"], True)
    a(f"s_cmp_eq_u32 s{S_CNT}, 2")
    a("s_cbranch_scc0 L_fi_lff")
    a(f"buffer_load_dword v{VFO}, v3, {sr(SRD_X,4)}, s{S_FLO} offen")
    a("s_branch L_fi_lff")
    a("L_fi_lffd:")
    wait_words(a, [VFO], [f"buffer_load_dword v{VFO}, v3, {sr(SRD_X,4)}, s{S_FLO} offen sc0 sc1"], "fi_o")
    a(f"""
    s_add_u32 m0, s{S_M0W2}, {3*SLOT}
    s_mov_b32 s{S_SW}, s{S_SW2}
    s_mov_b32 s{S_SX}, s{S_OX}
    s_mov_b32 s{S_CNT}, 4
    """)
    a("L_fi_ls:")
    loads(3, False, count + ["s_waitcnt vmcnt(18)", "s_barrier"], True)
    a("s_cbranch_scc1 L_fi_lsd")
    for slot in (4, 0, 1, 2):
        loads(slot, False, ["s_waitcnt vmcnt(18)", "s_barrier"], True)
    a("s_branch L_fi_ls")
    a("L_fi_lsd:")
    for n in (12, 6, 0):
        a(f"s_waitcnt vmcnt({n})")
        a("s_barrier")
    stamp(a, 2)
    if PROF:
        a("s_add_u32 s24, s24, 4")
        stamp(a, 3)
        prof_store(a)
    a("s_endpgm")
    a("L_fi_compute:")
    a(f"""
    s_lshr_b32 s{S_T}, s{S_W}, 1
    s_and_b32 s{S_T+1}, s{S_W}, 1
    s_lshl_b32 s{S_XO}, s{S_MT}, 18
    s_lshl_b32 s{S_T+2}, s{S_NP}, 8
    s_add_u32 s{S_XO}, s{S_XO}, s{S_T+2}
    s_lshl_b32 s{S_T+2}, s{S_T}, 17
    s_add_u32 s{S_XO}, s{S_XO}, s{S_T+2}
    s_lshl_b32 s{S_T+2}, s{S_T+1}, 7
    s_add_u32 s{S_XO}, s{S_XO}, s{S_T+2}
    s_lshl_b32 s{S_T+2}, s{S_HF}, 6
    s_add_u32 s{S_XO}, s{S_XO}, s{S_T+2}
    s_add_u32 s{S_XO+1}, s{S_XO}, 32768
    s_add_u32 s{S_XO+2}, s{S_XO}, 65536
    s_add_u32 s{S_XO+3}, s{S_XO}, 98304
    v_and_b32 v4, 15, v1
    v_lshlrev_b32 v4, 11, v4
    v_bfe_u32 v5, v1, 4, 1
    v_lshl_add_u32 v4, v5, 5, v4
    v_lshrrev_b32 v5, 5, v1
    v_lshl_add_u32 v{VXO}, v5, 4, v4
    s_mov_b32 s{SRD_IN}, s{P_X}
    s_mov_b32 s{SRD_IN+1}, s{P_X+1}
    s_mov_b32 s{SRD_IN+2}, {S*D*2}
    s_mov_b32 s{SRD_IN+3}, 0x20000
    s_mov_b32 s{SRD_OUT}, s{P_OUT}
    s_mov_b32 s{SRD_OUT+1}, s{P_OUT+1}
    s_mov_b32 s{SRD_OUT+2}, {S*D*2}
    s_mov_b32 s{SRD_OUT+3}, 0x20000
    s_mov_b32 s{SRD_X}, s{P_WS}
    s_mov_b32 s{SRD_X+1}, s{P_WS+1}
    s_mov_b32 s{SRD_X+2}, {WS_USED}
    s_mov_b32 s{SRD_X+3}, 0x20000
    """)
    for t in range(4):
        a(f"buffer_load_dwordx4 {vr(XIN+4*t,4)}, v{VXO}, {sr(SRD_IN,4)}, s{S_XO+t} offen")
    a(f"""
    v_lshrrev_b32 v3, 4, v1
    v_bfe_u32 v4, v1, 2, 2
    v_and_b32 v5, 3, v1
    v_lshl_add_u32 v6, v3, 2, v4
    v_lshrrev_b32 v7, 1, v6
    v_and_b32 v7, 3, v7
    v_lshlrev_b32 v7, 5, v7
    v_lshlrev_b32 v6, 7, v6
    v_lshl_add_u32 v6, v5, 3, v6
    s_lshl_b32 s{S_T+2}, s{S_T+1}, 13
    v_add_u32 v9, s{S_T+2}, v6
    s_lshl_b32 s{S_T+3}, s{S_HF}, 6
    s_lshl_b32 s{S_T+4}, s{S_T+1}, 6
    """)
    for b in range(4):
        a(f"s_xor_b32 s{S_T+2}, s{S_T+3}, {32*b}")
        a(f"v_xor_b32 v8, s{S_T+2}, v7")
        a(f"v_add_u32 v{TA+b}, v9, v8")
        a(f"v_add_u32 v{TA+4+b}, {2*SLOT}, v{TA+b}")
        a(f"v_add_u32 v{TA+8+b}, {4*SLOT}, v{TA+b}")
    for b in range(2):
        a(f"s_add_u32 s{S_T+2}, s{S_T+4}, {32*b}")
        a(f"v_xor_b32 v8, s{S_T+2}, v7")
        a(f"v_add_u32 v{TS+b}, v6, v8")
        a(f"v_add_u32 v{TS+2+b}, {2*SLOT}, v{TS+b}")
        a(f"v_add_u32 v{TS+4+b}, {4*SLOT}, v{TS+b}")
    a(f"""
    s_lshl_b32 s{S_T+2}, s{S_T}, 13
    s_add_u32 s{S_T+2}, s{S_T+2}, {XO}
    v_add_u32 v{XA}, s{S_T+2}, v{L16}
    v_add_u32 v{XA+1}, {2*SLOT}, v{XA}
    v_add_u32 v{XA+2}, {4*SLOT}, v{XA}
    s_lshl_b32 s{S_T}, s2, 2
    s_add_u32 s{S_T}, s{S_T}, s{S_W}
    s_xor_b32 s{S_T+1}, s{S_T}, {32 if MAPQ else 4}
    s_lshl_b32 s{S_PS}, s{S_T}, 12
    s_add_u32 s{S_PS}, s{S_PS}, {PX_OFF}
    s_lshl_b32 s{S_PL}, s{S_T+1}, 12
    s_add_u32 s{S_PL}, s{S_PL}, {PX_OFF}
    {"s_mov_b32 s%d, s%d" % (S_PL, S_PS) if "ownld" in EXP else ""}
    {"s_mov_b32 s%d, 0x7fff0000" % S_PL if "oobld" in EXP else ""}
    s_mov_b32 s{S_ONE}, 1.0
    s_mov_b32 s{S_ONE+1}, 1.0
    s_mov_b32 s{S_NL2E}, {f32hex(-1.4426950408889634)}
    s_mov_b32 s{S_NL2E+1}, {f32hex(-1.4426950408889634)}
    s_mov_b32 s{S_MASK}, 0xffff0000
    s_lshl_b32 s{S_FLO}, s2, 2
    s_add_u32 s{S_FLO}, s{S_FLO}, {FLO_OFF}
    s_cmp_eq_u32 s{S_W}, 0
    s_cselect_b32 s{S_FLO}, s{S_FLO}, 0x7fff0000
    v_mov_b32 v2, 0
    v_mov_b32 v3, 1
    s_waitcnt vmcnt(4)
    s_barrier
    buffer_store_dword v3, v2, {sr(SRD_X,4)}, s{S_FLO} offen sc0 sc1
    """)
    stamp(a, 1)
    if "tl" in EXP:
        a("s_mov_b32 m0, 0")
        a("s_memtime s[94:95]")

    def interval(s, ex0=(), ex1=(), pre0=None, pre1=None, tail=()):
        if pre0: pre0()
        if s == 0:
            for r in reads(0, 0): a(r)
            a("s_waitcnt lgkmcnt(0)")
        else:
            half(a, mfmas(s-1, 1), reads(s, 0), ex0)
        if pre1: pre1()
        if "tl" in EXP:
            a(f"v_writelane_b32 v{VTL}, s94, m0")
            a("s_add_u32 m0, m0, 1")
            half(a, mfmas(s, 0), reads(s, 1), ex1)
            for x in tail: a(x)
        else:
            half(a, mfmas(s, 0), reads(s, 1), list(tail) + list(ex1))
        if s < NST - 1: a("s_barrier")
        if "tl" in EXP: a("s_memtime s[94:95]")

    interval(0)
    a(f"s_mov_b32 s{S_CNT}, 6")
    a(".p2align 6")
    a("L_fi_cloop:")
    for s in range(1, 6):
        interval(s, tail=[f"s_sub_u32 s{S_CNT}, s{S_CNT}, 1", f"s_cmp_eq_u32 s{S_CNT}, 0"] if s == 2 else ())
        if s == 2: a("s_cbranch_scc1 L_fi_cdone")
    a("s_branch L_fi_cloop")
    a("L_fi_cdone:")
    stamp(a, 2)
    ex = {}
    def add(h, lst): ex.setdefault(h, []).extend(lst)
    for t in range(4): add(H_STORE[t], pack_store(t))
    add(H_STORE[3], xstamp(0))
    for t in range(4): add(H_LOAD[t], [recv(t, LDFL)])
    work = []
    for t in range(4):
        for b in range(2): work += silu_block(t, b)
    nh = H_SEND + 1 - H_SILU
    for n in range(nh):
        add(H_SILU + n, work[n*len(work)//nh:(n+1)*len(work)//nh])
    def check():
        lab, ok = a.newlabel("fi_poll"), a.newlabel("fi_ok")
        r = [acf(t, 3) + j for t in range(4) for j in range(4)]
        a(f"{lab}:")
        a("s_waitcnt vmcnt(0)")
        for x in xstamp(2): a(x)
        a(f"v_max3_u32 v{VCHK}, v{r[0]}, v{r[1]}, v{r[2]}")
        for j in range(3, 15, 2):
            a(f"v_max3_u32 v{VCHK}, v{r[j]}, v{r[j+1]}, v{VCHK}")
        a(f"v_max_u32 v{VCHK}, v{r[15]}, v{VCHK}")
        a(f"""
        v_cmp_eq_u32 vcc, -1, v{VCHK}
        s_cbranch_vccz {ok}
        s_add_u32 s{S_POLL}, s{S_POLL}, 1
        s_cmp_lt_u32 s{S_POLL}, {POLL_MAX}
        s_cbranch_scc0 {ok}
        """)
        for t in range(4): a(recv(t, " sc0 sc1"))
        a(f"s_branch {lab}")
        a(f"{ok}:")
        for x in xstamp(1): a(x)
    assert H_CHECK > max(H_LOAD) and H_SILU >= H_CHECK and min(H_LOAD) > max(H_STORE)
    for s in range(NFF, NST):
        q = s - NFF
        h0, h1 = 2*q - 1, 2*q
        interval(s, ex.get(h0, []), ex.get(h1, []),
                 pre0=check if H_CHECK == h0 else None, pre1=check if H_CHECK == h1 else None)
    last = mfmas(NST-1, 1)
    lx = ex.get(2*NSS - 1, [])
    for m in last: a(m)
    for x in lx: a(x)
    for x in xstamp(3): a(x)
    for t in range(4):
        x = XIN + 4*t
        a(f"v_permlane16_swap_b32 v{x}, v{x+2}")
        a(f"v_permlane16_swap_b32 v{x+1}, v{x+3}")
    a("s_nop 7")
    for t in range(4):
        x = XIN + 4*t
        for h in range(2):
            d, g = acs(t, h), acf(t, h)
            for q in range(2):
                xv = x + 2*h + q
                a(f"v_lshlrev_b32 v2, 16, v{xv}")
                a(f"v_and_b32 v3, 0xffff0000, v{xv}")
                a(f"v_fmac_f32 v2, v{d+2*q}, v{g+2*q}")
                a(f"v_fmac_f32 v3, v{d+2*q+1}, v{g+2*q+1}")
                a(f"v_cvt_pk_bf16_f32 v{xv}, v2, v3")
        a("s_nop 1")
        a(f"v_permlane16_swap_b32 v{x}, v{x+2}")
        a(f"v_permlane16_swap_b32 v{x+1}, v{x+3}")
        a("s_nop 1")
        a(f"buffer_store_dwordx4 {vr(x,4)}, v{VXO}, {sr(SRD_OUT,4)}, s{S_XO+t} offen")
    if PROF:
        a("s_waitcnt vmcnt(0)")
        stamp(a, 3)
        prof_store(a)
        if "tl" in EXP:
            a(f"""
            s_waitcnt lgkmcnt(0)
            v_writelane_b32 v{VTL}, s94, m0
            s_lshl_b32 s{S_T}, s2, 3
            s_add_u32 s{S_T}, s{S_T}, s{S_W}
            s_lshl_b32 s{S_T}, s{S_T}, 8
            s_add_u32 s{S_T}, s{S_T}, {PROF_OFF + 0x300000}
            v_lshlrev_b32 v2, 2, v1
            buffer_store_dword v{VTL}, v2, {sr(SRD_X,4)}, s{S_T} offen
            """)
    a(f"{tail_label}:")
    a("s_endpgm")
    return a.text()
```

```python
from asmlib import *
from layout import *

NAME = "ln_kernel"
PROF = False

def rsum8(a, v, t):
    a(f"""
    s_nop 1
    v_add_f32_dpp v{v}, v{v}, v{v} row_ror:8 row_mask:0xf bank_mask:0xf
    s_nop 0
    v_mov_b32 v{t}, v{v}
    s_nop 1
    v_permlane16_swap_b32 v{v}, v{t}
    s_nop 0
    v_add_f32 v{v}, v{v}, v{t}
    s_nop 0
    v_mov_b32 v{t}, v{v}
    s_nop 1
    v_permlane32_swap_b32 v{v}, v{t}
    s_nop 0
    v_add_f32 v{v}, v{v}, v{t}
    """)

def gen():
    a = Asm()
    X = 32
    R = 8
    a(f"""
    s_cmp_ge_u32 s2, 256
    s_cbranch_scc1 L_ln_end
    {"s_memrealtime s[40:41]" if PROF else ""}
    s_load_dwordx2 s[4:5], s[0:1], {KA_X}
    s_load_dwordx2 s[6:7], s[0:1], {KA_WS}
    v_and_b32 v1, 63, v0
    v_lshrrev_b32 v2, 6, v0
    v_and_b32 v3, 7, v1
    v_lshrrev_b32 v4, 3, v1
    v_lshlrev_b32 v5, 11, v3
    v_lshl_add_u32 v5, v2, 9, v5
    v_lshl_add_u32 v5, v4, 4, v5
    s_lshl_b32 s3, s2, 14
    s_waitcnt lgkmcnt(0)
    s_mov_b32 s8, s4
    s_mov_b32 s9, s5
    s_mov_b32 s10, {S*D*2}
    s_mov_b32 s11, 0x20000
    s_mov_b32 s12, s6
    s_mov_b32 s13, s7
    s_mov_b32 s14, {WS_USED}
    s_mov_b32 s15, 0x20000
    """)
    for i in range(4):
        a(f"buffer_load_dwordx4 v[{R+4*i}:{R+4*i+3}], v5, s[8:11], s3 offen offset:{128*i}")
    a(f"""
    v_and_b32 v25, 1, v0
    v_lshlrev_b32 v25, 10, v25
    v_mov_b32 v26, 0
    s_lshl_b32 s18, s2, 2
    s_add_u32 s18, s18, {FLW_OFF}
    buffer_store_dword v26, v25, s[12:15], s18 offen
    """)
    a(f"""
    v_lshrrev_b32 v6, 5, v1
    v_lshl_add_u32 v6, v2, 3, v6
    v_lshlrev_b32 v6, 10, v6
    v_and_b32 v7, 3, v4
    v_lshl_add_u32 v6, v7, 8, v6
    s_and_b32 s16, s2, 1
    s_lshl_b32 s16, s16, 3
    v_add_u32 v7, s16, v3
    v_lshl_add_u32 v6, v7, 4, v6
    s_lshr_b32 s17, s2, 1
    s_lshl_b32 s17, s17, 15
    s_add_u32 s17, s17, {XN_OFF}
    s_add_u32 s18, s17, 4096
    v_lshlrev_b32 v24, 2, v3
    v_lshl_add_u32 v25, v2, 5, v24
    s_mov_b32 s21, 0xffff0000
    """)
    for i in range(4):
        a(f"s_waitcnt vmcnt({3-i+1})")
        for j in range(4):
            a(f"v_lshlrev_b32 v{X+8*i+2*j}, 16, v{R+4*i+j}")
            a(f"v_and_b32 v{X+8*i+2*j+1}, s21, v{R+4*i+j}")
    for j in range(16):
        a(f"v_add_f32 v{R+j}, v{X+2*j}, v{X+2*j+1}")
    for step in (8, 4, 2, 1):
        for j in range(step):
            a(f"v_add_f32 v{R+j}, v{R+j}, v{R+j+step}")
    rsum8(a, R, 26)
    a(f"""
    ds_write_b32 v25, v{R}
    s_waitcnt lgkmcnt(0)
    s_barrier
    ds_read_b32 v26, v24
    ds_read_b32 v27, v24 offset:32
    ds_read_b32 v28, v24 offset:64
    ds_read_b32 v29, v24 offset:96
    s_waitcnt lgkmcnt(0)
    v_add_f32 v26, v26, v27
    v_add_f32 v28, v28, v29
    v_add_f32 v26, v26, v28
    v_mul_f32 v30, {1.0/1024}, v26
    """)
    for j in range(16):
        a(f"v_sub_f32 v{R+j}, v{X+2*j}, v30")
        a(f"v_sub_f32 v27, v{X+2*j+1}, v30")
        a(f"v_mul_f32 v{R+j}, v{R+j}, v{R+j}")
        a(f"v_fmac_f32 v{R+j}, v27, v27")
    for step in (8, 4, 2, 1):
        for j in range(step):
            a(f"v_add_f32 v{R+j}, v{R+j}, v{R+j+step}")
    rsum8(a, R, 26)
    a(f"""
    ds_write_b32 v25, v{R} offset:128
    s_waitcnt lgkmcnt(0)
    s_barrier
    ds_read_b32 v26, v24 offset:128
    ds_read_b32 v27, v24 offset:160
    ds_read_b32 v28, v24 offset:192
    ds_read_b32 v29, v24 offset:224
    s_waitcnt lgkmcnt(0)
    v_add_f32 v26, v26, v27
    v_add_f32 v28, v28, v29
    v_add_f32 v26, v26, v28
    v_mul_f32 v31, {1.0/1024}, v26
    v_cvt_pk_bf16_f32 v30, v30, v30
    v_cvt_pk_bf16_f32 v31, v31, v31
    v_and_b32 v30, s21, v30
    v_and_b32 v31, s21, v31
    v_add_f32 v31, 0x3727c5ac, v31
    v_cvt_pk_bf16_f32 v31, v31, v31
    v_and_b32 v31, s21, v31
    v_sqrt_f32 v31, v31
    s_nop 0
    v_cvt_pk_bf16_f32 v31, v31, v31
    v_and_b32 v31, s21, v31
    v_rcp_f32 v31, v31
    s_nop 0
    """)
    for j in range(16):
        a(f"v_sub_f32 v{X+2*j}, v{X+2*j}, v30")
        a(f"v_sub_f32 v{X+2*j+1}, v{X+2*j+1}, v30")
        a(f"v_cvt_pk_bf16_f32 v26, v{X+2*j}, v{X+2*j+1}")
        a(f"v_lshlrev_b32 v27, 16, v26")
        a(f"v_and_b32 v28, s21, v26")
        a(f"v_mul_f32 v27, v27, v31")
        a(f"v_mul_f32 v28, v28, v31")
        a(f"v_cvt_pk_bf16_f32 v{R+j}, v27, v28")
    for i in range(4):
        a(f"buffer_store_dwordx4 v[{R+4*i}:{R+4*i+3}], v6, s[12:15], s{17+(i>>1)} offen offset:{2048*(i&1)}")
    if PROF:
        a(f"""
        s_waitcnt vmcnt(0)
        s_memrealtime s[42:43]
        s_waitcnt lgkmcnt(0)
        s_lshl_b32 s20, s2, 4
        s_add_u32 s20, s20, {PROF_OFF + 0x380000}
        s_mov_b32 s14, 0x4000000
        v_mov_b32 v4, s40
        v_mov_b32 v5, s42
        v_mov_b32 v2, 0
        buffer_store_dwordx2 v[4:5], v2, s[12:15], s20 offen
        """)
    a("L_ln_end:")
    a("s_endpgm")
    return a.text()
```

```python
S = 2048; D = 1024; F = 3584; H = 32; DH = 32
XN_OFF = 0x0000000
QF_OFF = 0x0400000
KF_OFF = 0x0800000
VF_OFF = 0x0C00000
HF_OFF = 0x1000000
OF_OFF = 0x2000000
WT_OFF = 0x2400000
WT_TILE = 4608 * 128
PX_OFF = 0x2E00000
FLW_OFF = 0x3200000
FLO_OFF = 0x3200400
FLQ_OFF = 0x3200800
MB_OFF = 0x3201000
WS_USED = 0x3209000
PROF_OFF = 0x3800000
KA_X, KA_WQKV, KA_WO, KA_BX, KA_WG, KA_WU, KA_WD, KA_OUT, KA_DBG, KA_WS = [8*i for i in range(10)]
QSCALE = (32 ** -0.5) * 1.4426950408889634
```

```python
from asmlib import *
from layout import *
import struct
import k_final3

NAME = "attn_final_kernel"
RING = 65536
FLAG = 131072
MXCH = RING + 64
LXCH = MXCH + 4096
LDS = 163840
DELTA = 108.0
POLL_MAX = 1 << 16
LMAX = 2.0 ** 120

QA, QB = 8, 16
KF_, VF_ = 24, 32
SEL = 40
PA, PB = 44, 52
LA, LB = 60, 64
SA, SB = 68, 84
MA, MB = 100, 116
OA, OB = 132, 148
KP = 164
VADDR = 228
MXA, MXB = 229, 230
L16 = 231
VCD, VCO, VCB = 232, 233, 234
CA, CB = 236, 240
NVGPR = 244

SRD_MY, SRD_WS = 8, 16
S_W, S_HEAD, S_QB, S_MODE = 20, 21, 22, 23
S_SOFF, S_M0, S_CNT, S_HF = 24, 25, 26, 27
S_T = 28
S_KB = 36
S_P = 37
S_SOFF0 = 38
SRD_CA, SRD_CB = 40, 44
S_SA, S_SB, S_DA, S_DB = 48, 49, 50, 51
S_N1, S_N2 = 52, 56
S_PWO, S_PWD = 94, 68
S_FLW = 60
S_PX, S_PO = 100, 96
SRD_DBG, S_ZO = 12, 39
S_PXD, S_SB0 = 66, 67
S_HA, S_HB, S_HN = 62, 63, 65
VHA, VHB = (196, 200, 204, 224), (208, 212, 216, 220)
HROW = 114688
OOBH = 0x70000000
VZA, VZ = 13, 14
OOB = 0x7fff0000
COPY = True
CFLAGS = " sc0 sc1"
OFLAGS = " sc0 sc1"

def f32hex(x):
    return "0x%08x" % struct.unpack("<I", struct.pack("<f", x))[0]

PROF = False
PAD = 0
NORS = False
def stamp(a, i):
    if PROF:
        a(f"s_memtime s[{70+4*i}:{71+4*i}]")
        a(f"s_memrealtime s[{72+4*i}:{73+4*i}]")

def xstamp(a, i):
    if PROF: a(f"s_memrealtime s[{86+2*i}:{87+2*i}]")

def prof_store(a):
    if not PROF: return
    a(f"""
    s_waitcnt lgkmcnt(0)
    s_lshl_b32 s{S_T}, s2, 3
    s_add_u32 s{S_T}, s{S_T}, s{S_W}
    s_lshl_b32 s{S_T}, s{S_T}, 6
    s_add_u32 s{S_T}, s{S_T}, {PROF_OFF + 0x100000}
    s_mov_b32 s{SRD_WS+2}, 0x4000000
    """)
    for i in range(4):
        a(f"v_mov_b32 v{4+2*i}, s{70+4*i}")
        a(f"v_mov_b32 v{5+2*i}, s{72+4*i}")
    for i in range(4):
        a(f"v_mov_b32 v{16+i}, s{86+2*i}")
    a(f"""
    v_mov_b32 v2, 0
    buffer_store_dwordx4 v[4:7], v2, {sr(SRD_WS,4)}, s{S_T} offen
    buffer_store_dwordx4 v[8:11], v2, {sr(SRD_WS,4)}, s{S_T} offen offset:16
    buffer_store_dwordx4 v[16:19], v2, {sr(SRD_WS,4)}, s{S_T} offen offset:32
    """)

def m32(d, A, B, C):
    return f"v_mfma_f32_32x32x16_bf16 {vr(d,16)}, {vr(A,4)}, {vr(B,4)}, {C}"
def m16(d, A, B):
    return f"v_mfma_f32_16x16x32_bf16 {vr(d,4)}, {vr(A,4)}, {vr(B,4)}, {vr(d,4)}"

def phase(a, x, kreads, vreads, extra, kwait, vwait):
    if x == 0: S, P, Sy, Py, Qy, My, Oy, Ly = SA, PA, SB, PB, QB, MB, OB, LB
    else:      S, P, Sy, Py, Qy, My, Oy, Ly = SB, PB, SA, PA, QA, MA, OA, LA
    E = [f"v_exp_f32 v{S+j}, v{S+j}" for j in range(16)]
    C = [f"v_cvt_pk_bf16_f32 v{P+k}, v{S+2*k}, v{S+2*k+1}" for k in range(8)]
    ex = list(extra)
    def X(n):
        out = ex[:n]; del ex[:n]; return out
    seq = []
    if kwait: seq.append(kwait)
    seq += [m32(Sy, KF_, Qy, vr(My,16)), E[0], E[1], E[2]] + X(2)
    if vwait: seq.append(vwait)
    seq += [m32(Oy, VF_, Py, vr(Oy,16)), E[3], C[0], E[4], E[5]] + X(2)
    seq += [m32(Sy, KF_+4, Qy+4, vr(Sy,16)), C[1], E[6]] + kreads + [E[7], E[8]] + X(2)
    seq += [m32(Oy, VF_+4, Py+4, vr(Oy,16)), C[2], C[3], E[9]] + vreads + [E[10]] + X(2)
    seq += [m16(Ly, SEL, Py), E[11], C[4], E[12]]
    seq += [m16(Ly, SEL, Py+4), E[13], C[5], E[14], E[15], C[6]] + X(99) + [C[7]]
    if PAD: seq.append(f"s_nop {PAD-1}")
    if NORS: seq = [s for s in seq if "16x16x32" not in s]
    for s in seq: a(s)

def max_tiles(a, kregs, extra=()):
    extra = list(extra)
    bufa, bufb = [SA, MA], [SB, MB]
    def mx(dst, buf, lo):
        return [f"v_max3_f32 v{dst}, v{buf+2*k}, v{buf+2*k+1}, v{dst}" for k in range(lo, lo+4)]
    n = len(kregs)
    for i in range(n + 1):
        if i < n:
            k = kregs[i]
            mm = [m32(bufa[i&1], k, QA, "0"), m32(bufa[i&1], k+4, QA+4, vr(bufa[i&1],16)),
                  m32(bufb[i&1], k, QB, "0"), m32(bufb[i&1], k+4, QB+4, vr(bufb[i&1],16))]
        else:
            mm = ["s_nop 7", "s_nop 3", "s_nop 7", "s_nop 3"]
        pv = [[], [], [], []]
        if i > 0:
            j = (i-1) & 1
            pv = [mx(MXA, bufa[j], 0), mx(MXA, bufa[j], 4), mx(MXB, bufb[j], 0), mx(MXB, bufb[j], 4)]
        for m, f in zip(mm, pv):
            a(m)
            for s in f: a(s)
            if extra:
                for s in extra.pop(0): a(s)
    assert not extra

def half_max(a):
    for mxr in (MXA, MXB):
        a(f"""
        v_mov_b32 v2, v{mxr}
        s_nop 1
        v_permlane32_swap_b32 v{mxr}, v2
        s_nop 1
        v_max_f32 v{mxr}, v{mxr}, v2
        """)

def set_negm(a, delta):
    for mxr, M in ((MXA, MA), (MXB, MB)):
        a(f"v_sub_f32 v2, {f32hex(-delta) if delta else 0}, v{mxr}")
        for j in range(16):
            a(f"v_mov_b32 v{M+j}, v2")

def dma():
    return [f"buffer_load_dwordx4 v{L16}, {sr(SRD_MY,4)}, s{S_SOFF} offen lds",
            f"buffer_load_dwordx4 v{L16}, {sr(SRD_MY,4)}, s{S_SOFF} offen offset:1024 lds",
            f"s_add_u32 s{S_SOFF}, s{S_SOFF}, 4096"]

HEXP = ""
def nh(): return 0 if HEXP == "none" else 2
def h_ops(j):
    k = j & 3
    r = []
    if HEXP == "none": return r
    for v, so in ((VHA[k], S_HA), (VHB[k], S_HB)):
        r.append(f"buffer_store_dwordx4 {vr(v,4)}, v{L16}, {sr(SRD_WS,4)}, s{so} offen sc0 sc1")
        if k < 3: r.append(f"s_add_u32 s{so}, s{so}, {HROW}")
    if k == 3:
        r += [f"s_mov_b32 s{S_HA}, {OOBH}", f"s_mov_b32 s{S_HB}, s{S_HN}", f"s_mov_b32 s{S_HN}, {OOBH}"]
    return r

def w_head(): return 7 + 3*nh()
def w_copy(): return 8 + 3*nh()
def copy_ops(j, peeled):
    if not COPY or peeled: return []
    ld = lambda r, srd, so: f"buffer_load_dwordx4 {vr(r,4)}, v{L16}, {sr(srd,4)}, s{so} offen"
    st = lambda r, v, so: f"buffer_store_dwordx4 {vr(r,4)}, v{v}, {sr(SRD_WS,4)}, s{so} offen{CFLAGS}"
    k = j & 3
    if k == 0: return [f"s_waitcnt vmcnt({w_copy()})", st(CA, VCD, S_DA)]
    if k == 1: return [ld(CA, SRD_CA, S_SA)]
    if k == 2:
        return [f"s_waitcnt vmcnt({w_copy()})", st(CB, VCB, S_DB),
                f"s_cmp_eq_u32 s{S_CNT}, 2",
                f"s_cselect_b32 s{SRD_CB}, s{S_PWO}, s{SRD_CB}",
                f"s_cselect_b32 s{SRD_CB+1}, s{S_PWO+1}, s{SRD_CB+1}",
                f"s_cselect_b32 s{SRD_CB+2}, {D*D*2}, s{SRD_CB+2}",
                "s_cselect_b64 vcc, -1, 0",
                f"v_cndmask_b32 v{VCB}, v{VCB}, v{VCO}, vcc"]
    r = [ld(CB, SRD_CB, S_SB)]
    for i in range(4): r.append(f"s_mov_b32 s{S_SA+i}, s{S_N1+i}")
    for i in range(4): r.append(f"s_mov_b32 s{S_N1+i}, s{S_N2+i}")
    return r

def copy_setup(a):
    if not COPY: return
    T = S_T
    a(f"""
    v_lshrrev_b32 v3, 3, v1
    v_and_b32 v4, 7, v1
    v_mul_u32_u24 v3, {WT_TILE}, v3
    v_lshl_add_u32 v{VCD}, v4, 4, v3
    v_mov_b32 v{VCB}, v{VCD}
    v_lshrrev_b32 v3, 4, v1
    v_bfe_u32 v4, v1, 2, 1
    v_lshl_add_u32 v3, v3, 1, v4
    v_mul_u32_u24 v3, {WT_TILE}, v3
    v_bfe_u32 v4, v1, 3, 1
    v_and_b32 v5, 3, v1
    v_lshl_add_u32 v4, v4, 2, v5
    v_lshl_add_u32 v{VCO}, v4, 4, v3
    s_lshr_b32 s{T}, s{S_W}, 1
    s_and_b32 s{T+1}, s{S_W}, 1
    s_mul_i32 s{T+2}, s2, 14
    s_add_u32 s{T+2}, s{T+2}, s{T}
    s_lshl_b32 s{T+3}, s2, 2
    s_add_u32 s{T+3}, s{T+3}, s{T}
    s_lshl_b32 s{T+4}, s{T+1}, 10
    s_mul_i32 s{T+5}, s{T+1}, {8*WT_TILE}
    s_add_u32 s{T+5}, s{T+5}, {WT_OFF}
    s_lshl_b32 s{S_SB}, s{T+2}, 11
    s_add_u32 s{S_SB}, s{S_SB}, s{T+4}
    s_mov_b32 s{SRD_CA}, s{S_PWD}
    s_mov_b32 s{SRD_CA+1}, s{S_PWD+1}
    s_mov_b32 s{SRD_CA+2}, {F*D*2}
    s_mov_b32 s{SRD_CA+3}, 0x20000
    s_mov_b32 s{SRD_CB}, s{S_PWD}
    s_mov_b32 s{SRD_CB+1}, s{S_PWD+1}
    s_mov_b32 s{SRD_CB+2}, {F*D*2}
    s_mov_b32 s{SRD_CB+3}, 0x20000
    v_mov_b32 v{CA}, -1
    v_mov_b32 v{CA+1}, -1
    v_mov_b32 v{CA+2}, -1
    v_mov_b32 v{CA+3}, -1
    s_lshl_b32 s{T+6}, s2, 14
    s_lshl_b32 s{T+7}, s{S_W}, 11
    s_add_u32 s{T+6}, s{T+6}, s{T+7}
    s_add_u32 s{T+6}, s{T+6}, {PX_OFF}
    s_mov_b32 s{S_PXD}, s{T+6}
    s_mov_b32 s{S_SB0}, s{S_SB}
    s_lshl_b32 s{T+6}, s{T+2}, 7
    s_add_u32 s{T+6}, s{T+6}, s{T+5}
    s_cmp_ge_u32 s{S_W}, 4
    s_cselect_b32 s{T+7}, {OOB}, 0
    s_add_u32 s{S_SA}, s{S_SB}, {4*2048}
    s_add_u32 s{S_N1}, s{S_SB}, {12*2048}
    s_or_b32 s{S_N1}, s{S_N1}, s{T+7}
    s_add_u32 s{S_SB}, s{S_SB}, {8*2048}
    s_mov_b32 s{S_DA}, {OOB}
    s_mov_b32 s{S_DB}, s{T+6}
    s_lshl_b32 s{S_N1+1}, s{T+3}, 11
    s_add_u32 s{S_N1+1}, s{S_N1+1}, s{T+4}
    s_add_u32 s{S_N1+2}, s{T+6}, {4*128}
    s_add_u32 s{S_N1+3}, s{T+6}, {8*128}
    s_mov_b32 s{S_N2}, {OOB}
    s_mov_b32 s{S_N2+1}, {OOB}
    s_add_u32 s{S_N2+2}, s{T+6}, {12*128}
    s_or_b32 s{S_N2+2}, s{S_N2+2}, s{T+7}
    s_add_u32 s{T+3}, s{T+3}, {F}
    s_lshl_b32 s{S_N2+3}, s{T+3}, 7
    s_add_u32 s{S_N2+3}, s{S_N2+3}, s{T+5}
    s_lshl_b32 s{S_FLW}, s2, 2
    s_add_u32 s{S_FLW}, s{S_FLW}, {FLW_OFF}
    s_cmp_eq_u32 s{S_W}, 0
    s_cselect_b32 s{S_FLW}, s{S_FLW}, {OOB}
    """)

def deferred():
    D = dma()
    return [[f"s_add_u32 m0, s{S_M0}, {2*16384}", "s_nop 0", D[0]], [D[1], D[2]],
            [f"buffer_store_dwordx4 {vr(CA,4)}, v{L16}, {sr(SRD_WS,4)}, s{S_PXD} offen sc0 sc1"],
            [f"buffer_store_dwordx4 {vr(CA,4)}, v{L16}, {sr(SRD_WS,4)}, s{S_PXD} offen offset:1024 sc0 sc1"],
            [f"buffer_load_dwordx4 {vr(CB,4)}, v{L16}, {sr(SRD_CB,4)}, s{S_SB0} offen"]]

def stage(a, j, do_dma, vm, last_in_loop=False, peeled=False, head=()):
    slot = j & 3
    a(f"s_waitcnt vmcnt({vm})")
    a("s_barrier")
    for x in head: a(x)
    D = dma()
    for u in range(2):
        base = slot*16384 + u*4096
        kr = [f"ds_read_b128 {vr(KF_+4*f,4)}, v{VADDR} offset:{base+f*1024}" for f in range(2)]
        vrd = [f"ds_read_b128 {vr(VF_+4*f,4)}, v{VADDR} offset:{base+2048+f*1024}" for f in range(2)]
        ex1, ex2 = [], []
        if u == 0 and do_dma:
            ex1 = [f"s_add_u32 m0, s{S_M0}, {((j+3)&3)*16384}", "s_nop 0", D[0]]
            ex2 = [D[1], D[2]]
            if not peeled: ex2 += h_ops(j)
        if u == 1: ex1 = copy_ops(j, peeled)
        if u == 1 and last_in_loop:
            ex2 = [f"s_sub_u32 s{S_CNT}, s{S_CNT}, 1", f"s_cmp_lg_u32 s{S_CNT}, 0"]
        phase(a, 0, kr, vrd, ex1, None, None)
        phase(a, 1, [], [], ex2, "s_waitcnt lgkmcnt(2)", "s_waitcnt lgkmcnt(0)")

def gen(tail_label):
    a = Asm()
    a.uid = 500
    stamp(a, 0)
    a(f"""
    s_mov_b32 s4, s6
    s_mov_b32 s5, s7
    v_lshrrev_b32 v2, 6, v0
    v_and_b32 v1, 63, v0
    s_and_b32 s{S_T}, s2, 7
    s_lshl_b32 s{S_HEAD}, s{S_T}, 1
    s_bfe_u32 s{S_T+1}, s2, 0x10003
    s_add_u32 s{S_HEAD}, s{S_HEAD}, s{S_T+1}
    s_bfe_u32 s{S_T+1}, s2, 0x10004
    s_lshl_b32 s{S_T+1}, s{S_T+1}, 4
    s_add_u32 s{S_HEAD}, s{S_HEAD}, s{S_T+1}
    s_lshr_b32 s{S_QB}, s2, 5
    v_readfirstlane_b32 s{S_W}, v2
    v_lshlrev_b32 v{L16}, 4, v1
    s_lshl_b32 s{S_KB}, s{S_HEAD}, 17
    s_mov_b32 s{S_MODE}, 0
    s_and_b32 s{S_P}, s{S_W}, 3
    s_lshr_b32 s{S_HF}, s{S_W}, 2
    s_lshl_b32 s{S_T}, s{S_QB}, 3
    s_lshl_b32 s{S_T+1}, s{S_P}, 1
    s_add_u32 s{S_T}, s{S_T}, s{S_T+1}
    s_lshl_b32 s{S_T+2}, s{S_T}, 11
    s_add_u32 s{S_T+2}, s{S_T+2}, s{S_KB}
    s_add_u32 s{S_T+2}, s{S_T+2}, {QF_OFF}
    s_lshl_b32 s{S_T+5}, s{S_HF}, 16
    s_add_u32 s{S_T+5}, s{S_T+5}, s{S_KB}
    s_and_b32 s{S_T+6}, s{S_P}, 1
    s_cmp_eq_u32 s{S_T+6}, 0
    s_cselect_b32 s{S_T+3}, 0, {VF_OFF - KF_OFF - 2048}
    s_cselect_b32 s{S_T+4}, s{S_HF}, 0
    s_add_u32 s{S_T+3}, s{S_T+3}, {KF_OFF + 2048}
    s_add_u32 s{S_T+3}, s{S_T+3}, s{S_T+5}
    s_lshl_b32 s{S_T+4}, s{S_T+4}, 11
    s_sub_u32 s{S_T+4}, 65536, s{S_T+4}
    s_lshr_b32 s{S_T}, s{S_P}, 1
    s_lshl_b32 s{S_SOFF0}, s{S_T}, 11
    s_lshl_b32 s{S_M0}, s{S_T}, 12
    s_lshl_b32 s{S_T+6}, s{S_T+6}, 11
    s_add_u32 s{S_M0}, s{S_M0}, s{S_T+6}
    s_lshl_b32 s{S_T}, s{S_HF}, 13
    s_add_u32 s{S_M0}, s{S_M0}, s{S_T}
    v_add_u32 v{VADDR}, s{S_T}, v{L16}
    s_add_u32 s{S_KB}, s{S_T+5}, {KF_OFF}
    s_mov_b32 s{SRD_WS}, s4
    s_mov_b32 s{SRD_WS+1}, s5
    s_mov_b32 s{SRD_WS+2}, {WS_USED}
    s_mov_b32 s{SRD_WS+3}, 0x20000
    s_add_u32 s{SRD_MY}, s4, s{S_T+3}
    s_addc_u32 s{SRD_MY+1}, s5, 0
    s_mov_b32 s{SRD_MY+2}, s{S_T+4}
    s_mov_b32 s{SRD_MY+3}, 0x20000
    """)
    a(f"""
    s_cmp_eq_u32 s{S_W}, 0
    s_cbranch_scc0 L_at_go
    s_mov_b32 s{S_CNT}, 0
L_at_z:
    v_cmp_ne_u32 vcc, 32, v{VZ}
    s_cbranch_vccz L_at_zok
    s_add_u32 s{S_CNT}, s{S_CNT}, 1
    s_cmp_lt_u32 s{S_CNT}, {POLL_MAX}
    s_cbranch_scc0 L_at_zok
    buffer_load_dword v{VZ}, v{VZA}, {sr(SRD_DBG,4)}, s{S_ZO} offen sc0 sc1
    s_waitcnt vmcnt(0)
    s_branch L_at_z
L_at_zok:
    s_and_b32 s{S_SOFF}, s2, 7
    s_lshl_b32 s{S_SOFF}, s{S_SOFF}, 7
    s_add_u32 s{S_SOFF}, s{S_SOFF}, {FLQ_OFF}
    v_and_b32 v8, 31, v1
    v_lshlrev_b32 v8, 2, v8
L_at_q:
    buffer_load_dword v9, v8, {sr(SRD_WS,4)}, s{S_SOFF} offen sc0 sc1
    s_add_u32 s{S_CNT}, s{S_CNT}, 1
    s_waitcnt vmcnt(0)
    v_cmp_ne_u32 vcc, 1, v9
    s_cbranch_vccz L_at_go
    s_cmp_lt_u32 s{S_CNT}, {POLL_MAX}
    s_cbranch_scc1 L_at_q
L_at_go:
    s_barrier
    """)
    xstamp(a, 0)
    for t in range(2):
        for f in range(2):
            a(f"buffer_load_dwordx4 {vr(QA+8*t+4*f,4)}, v{L16}, {sr(SRD_WS,4)}, s{S_T+2} offen offset:{t*2048+f*1024}")
    a("L_at_restart:")
    a(f"s_mov_b32 s{S_SOFF}, s{S_SOFF0}")
    D = dma()
    for st in range(2):
        a(f"s_add_u32 m0, s{S_M0}, {st*16384}")
        a("s_nop 0")
        for d in D: a(d)
    for f in range(2):
        a(f"buffer_load_dwordx4 {vr(KF_+4*f,4)}, v{L16}, {sr(SRD_WS,4)}, s{S_KB} offen offset:{f*1024}")
    copy_setup(a)
    c1 = 3
    a(f"""
    v_mov_b32 v2, 0
    v_mov_b32 v3, {FLAG}
    ds_write_b32 v3, v2
    v_bfe_u32 v4, v1, 4, 1
    v_bfe_u32 v5, v1, 2, 1
    v_cmp_eq_u32 vcc, v4, v5
    v_mov_b32 v6, 0x3f803f80
    s_nop 0
    v_cndmask_b32 v{SEL}, 0, v6, vcc
    """)
    for j in range(1, 4): a(f"v_mov_b32 v{SEL+j}, v{SEL}")
    for r, n in ((VF_, 8), (PB, 8), (LA, 4), (LB, 4), (OA, 16), (OB, 16)):
        for j in range(n): a(f"v_mov_b32 v{r+j}, 0")
    a(f"""
    """)
    xstamp(a, 1)
    a(f"""
    s_waitcnt vmcnt(2) lgkmcnt(0)
    s_barrier
    """)
    xstamp(a, 2)
    a(f"""
    s_cmp_eq_u32 s{S_MODE}, 0
    s_cbranch_scc1 L_at_sample
    """)
    for g in deferred():
        for x in g: a(x)
    a("s_branch L_at_havem")
    a("L_at_sample:")
    for i in range(4):
        for f in range(2):
            a(f"ds_read_b128 {vr(KP+8*i+4*f,4)}, v{VADDR} offset:{(i>>1)*16384 + (i&1)*4096 + f*1024}")
    a(f"v_mov_b32 v{MXA}, 0xff800000")
    a(f"v_mov_b32 v{MXB}, 0xff800000")
    a("s_waitcnt lgkmcnt(0)")
    max_tiles(a, [KP+8*i for i in range(4)], [[]] + deferred())
    half_max(a)
    a(f"""
    v_lshlrev_b32 v3, 2, v1
    s_lshl_b32 s{S_T}, s{S_W}, 9
    s_xor_b32 s{S_T+1}, s{S_T}, 2048
    s_add_u32 s{S_T}, s{S_T}, {MXCH}
    s_add_u32 s{S_T+1}, s{S_T+1}, {MXCH}
    v_add_u32 v4, s{S_T}, v3
    v_add_u32 v5, s{S_T+1}, v3
    ds_write_b32 v4, v{MXA}
    ds_write_b32 v4, v{MXB} offset:256
    s_waitcnt lgkmcnt(0)
    s_barrier
    ds_read_b32 v6, v5
    ds_read_b32 v7, v5 offset:256
    s_waitcnt lgkmcnt(0)
    v_max_f32 v{MXA}, v{MXA}, v6
    v_max_f32 v{MXB}, v{MXB}, v7
    """)
    set_negm(a, DELTA)
    a("L_at_havem:")
    xstamp(a, 3)
    a(f"s_waitcnt vmcnt({2+c1})")
    a(m32(SA, KF_, QA, vr(MA,16)))
    a(m32(SA, KF_+4, QA+4, vr(SA,16)))
    a(f"s_mov_b32 s{S_CNT}, 3")
    a("s_nop 7")
    a("s_nop 3")
    stamp(a, 1)
    a(".p2align 6")
    a("L_at_loop:")
    for j in range(4):
        stage(a, j, True, w_head(), last_in_loop=(j == 3))
    a("s_cbranch_scc1 L_at_loop")
    flagw = [f"v_mov_b32 v2, 0", f"v_mov_b32 v3, 1",
             f"buffer_store_dword v3, v2, {sr(SRD_WS,4)}, s{S_FLW} offen sc0 sc1"]
    pollw = [f"buffer_load_dwordx4 {vr(CA,4)}, v{L16}, {sr(SRD_WS,4)}, s{S_T} offen"]
    stage(a, 12, True, w_head(), peeled=True)
    stage(a, 13, False, 5 + nh(), peeled=True, head=flagw)
    stage(a, 14, False, 4 + nh(), peeled=True)
    stage(a, 15, False, 1, peeled=True, head=[f"s_mov_b32 s{S_T}, {FLW_OFF}"] + pollw)
    stamp(a, 2)
    a(m32(OB, VF_, PB, vr(OB,16)))
    a(m16(LB, SEL, PB))
    a(m32(OB, VF_+4, PB+4, vr(OB,16)))
    a(m16(LB, SEL, PB+4))
    a(f"""
    s_lshl_b32 s{S_T}, s{S_W}, 12
    s_xor_b32 s{S_T+1}, s{S_T}, 16384
    v_add_u32 v4, s{S_T}, v{L16}
    v_add_u32 v5, s{S_T+1}, v{L16}
    v_lshlrev_b32 v3, 2, v1
    s_lshl_b32 s{S_T}, s{S_W}, 8
    s_xor_b32 s{S_T+1}, s{S_T}, 1024
    s_add_u32 s{S_T}, s{S_T}, {LXCH}
    s_add_u32 s{S_T+1}, s{S_T+1}, {LXCH}
    v_add_u32 v6, s{S_T}, v3
    v_add_u32 v7, s{S_T+1}, v3
    v_and_b32 v2, 15, v1
    v_lshlrev_b32 v2, 4, v2
    v_lshrrev_b32 v3, 5, v1
    v_lshl_add_u32 v2, v3, 8, v2
    v_bfe_u32 v3, v1, 4, 1
    v_lshl_add_u32 v2, v3, 15, v2
    s_lshl_b32 s{S_T}, s{S_QB}, 3
    s_lshl_b32 s{S_T+1}, s{S_P}, 1
    s_add_u32 s{S_T}, s{S_T}, s{S_T+1}
    s_add_u32 s{S_T}, s{S_T}, s{S_HF}
    s_lshl_b32 s{S_T}, s{S_T}, 16
    s_lshl_b32 s{S_T+1}, s{S_HEAD}, 10
    s_add_u32 s{S_T}, s{S_T}, s{S_T+1}
    s_add_u32 s{S_T}, s{S_T}, {OF_OFF}
    s_mov_b32 s{S_T+2}, {f32hex(LMAX)}
    s_cmp_eq_u32 s{S_HF}, 0
    s_cbranch_scc0 L_at_x1
    """)
    def xch(send_o, send_l, keep_o, keep_l):
        for k in range(4):
            a(f"ds_write_b128 v4, {vr(send_o+4*k,4)} offset:{k*1024}")
        a(f"ds_write_b32 v6, v{send_l}")
        a("s_waitcnt lgkmcnt(0)")
        a("s_barrier")
        for k in range(4):
            a(f"ds_read_b128 {vr(SA+4*k,4)}, v5 offset:{k*1024}")
        a(f"ds_read_b32 v{KP}, v7")
        a("s_waitcnt lgkmcnt(0)")
        a(f"v_add_f32 v{KP}, v{KP}, v{keep_l}")
        a(f"v_rcp_f32 v{KP+2}, v{KP}")
        a(f"v_cmp_nle_f32 vcc, v{KP}, s{S_T+2}")
        for j in range(16):
            a(f"v_add_f32 v{SA+j}, v{SA+j}, v{keep_o+j}")
        a("s_branch L_at_xdone" if keep_o == OA else "")
    a("s_nop 7")
    xch(OB, LB, OA, LA)
    a("L_at_x1:")
    xch(OA, LA, OB, LB)
    a("L_at_xdone:")
    for k in range(8):
        a(f"v_pk_mul_f32 {vr(SA+2*k,2)}, {vr(SA+2*k,2)}, {vr(KP+2,2)} op_sel_hi:[1,0]")
    order = [0, 1, 4, 5, 2, 3, 6, 7]
    for i, k in enumerate(order):
        a(f"v_cvt_pk_bf16_f32 v{SB+i}, v{SA+2*k}, v{SA+2*k+1}")
    a(f"buffer_store_dwordx4 {vr(SB,4)}, v2, {sr(SRD_WS,4)}, s{S_T} offen{OFLAGS}")
    a(f"buffer_store_dwordx4 {vr(SB+4,4)}, v2, {sr(SRD_WS,4)}, s{S_T} offen offset:512{OFLAGS}")
    a(f"""
    s_cmp_eq_u32 s{S_MODE}, 0
    s_cbranch_scc0 L_at_fin2
    s_cmp_eq_u64 vcc, 0
    s_cbranch_scc1 L_at_noflag
    v_mov_b32 v4, 1
    v_mov_b32 v3, {FLAG}
    ds_write_b32 v3, v4
L_at_noflag:
    s_waitcnt lgkmcnt(0)
    s_barrier
    v_mov_b32 v3, {FLAG}
    ds_read_b32 v4, v3
    s_waitcnt lgkmcnt(0)
    v_readfirstlane_b32 s{S_T}, v4
    s_cmp_eq_u32 s{S_T}, 0
    s_cbranch_scc1 L_at_fin
    s_mov_b32 s{S_MODE}, 1
    v_mov_b32 v{MXA}, 0xff800000
    v_mov_b32 v{MXB}, 0xff800000
    s_lshl_b32 s{S_T}, s{S_HEAD}, 17
    s_add_u32 s{S_T}, s{S_T}, {KF_OFF}
    s_mov_b32 s{S_CNT}, 8
L_at_fb:
    """)
    for i in range(8):
        if i and i % 2 == 0: a(f"s_add_u32 s{S_T}, s{S_T}, 4096")
        for f in range(2):
            a(f"buffer_load_dwordx4 {vr(KP+8*i+4*f,4)}, v{L16}, {sr(SRD_WS,4)}, s{S_T} offen offset:{(i&1)*2048+f*1024}")
    a(f"s_add_u32 s{S_T}, s{S_T}, 4096")
    a("s_waitcnt vmcnt(0)")
    max_tiles(a, [KP+8*i for i in range(8)])
    a(f"""
    s_sub_u32 s{S_CNT}, s{S_CNT}, 1
    s_cmp_lg_u32 s{S_CNT}, 0
    s_cbranch_scc1 L_at_fb
    """)
    half_max(a)
    set_negm(a, 0)
    a("s_waitcnt vmcnt(0)")
    a("s_barrier")
    a("s_branch L_at_restart")
    a("L_at_fin2:")
    a("s_barrier")
    a("L_at_fin:")
    if PROF:
        stamp(a, 3)
        prof_store(a)
        a(f"s_mov_b32 s{SRD_WS+2}, {WS_USED}")
    return a.text() + k_final3.gen(tail_label=tail_label)
```

```python
from asmlib import *
from layout import *
import struct
import k_ln, k_attn

NAME = "block_kernel"
SLOT = 36864
LDS = 163840
XREG = 20480
WF = 16
XF = 36
TA = 68
XA = 80
DV = 82
L16 = 86
ACC = 96
SRD_G = 12
SRD_WS = 32
SOFF = 36
SINC = 40
S_M0 = 44
S_CNT = 45
S_X8, S_CL, S_MT, S_W, S_CG = 46, 47, 48, 49, 50
S_T = 52
S_EP = 60
VCD, VCX = 88, 92
SRD_CS = 88
S_CSRC, S_CDST, S_CM3, S_CSO, S_CDO = 92, 93, 94, 95, 68
OOB = 0x7fff0000
EFL = " sc0 sc1"

def acc(p, t): return ACC + (p*4 + t)*4
def wf(p): return WF + (p % 5)*4
def xf(b, t): return XF + b*16 + t*4

BLK_REG = [0, 1, 2, 2, 3, 3, 4, 4, 5, 5]
BLK_IMM = [0, 0, 1024, 2048, 1024, 2048, 1024, 2048, 1024, 2048]

def mfma(p, t, xb, vswap, czero=False):
    d = acc(p, t)
    c = "0" if czero else vr(d, 4)
    A, B = vr(wf(p), 4), vr(xf(xb, t), 4)
    if vswap and p < 2:
        A, B = B, A
    return f"v_mfma_f32_16x16x32_bf16 {vr(d,4)}, {A}, {B}, {c}"

def wread(p, slot):
    reg = TA + (slot >> 1)*6 + BLK_REG[p]
    off = (slot & 1)*SLOT + BLK_IMM[p]
    return [f"ds_read_b64_tr_b16 {vr(wf(p),2)}, v{reg} offset:{off}",
            f"ds_read_b64_tr_b16 {vr(wf(p)+2,2)}, v{reg} offset:{off+512}"]

def xread(xb, slot):
    reg = XA + (slot >> 1)
    return [f"ds_read_b128 {vr(xf(xb,t),4)}, v{reg} offset:{(slot&1)*SLOT + t*1024}" for t in range(4)]

def dma_ops(role, slot):
    if role == "W":
        so = [SOFF, SOFF+1, SOFF+1, SOFF+2, SOFF+2]
        dv = [DV, DV+1, DV+1, DV+2, DV+2]
        ops = []
        for g in range(5):
            grp = []
            if g == 0: grp += [f"s_add_u32 m0, s{S_M0}, {slot*SLOT}", "s_nop 0"]
            if g == 4: grp += [f"s_add_u32 m0, s{S_M0}, {slot*SLOT + 4096}", "s_nop 0"]
            imm = (g & 3)*1024
            grp.append(f"buffer_load_dwordx4 v{dv[g]}, {sr(SRD_G+4*g,4)}, s{so[g]} offen offset:{imm} lds")
            if g in (0, 2, 4):
                k = g >> 1
                grp.append(f"s_add_u32 s{SOFF+k}, s{SOFF+k}, s{SINC+k}")
            ops.append(grp)
        return ops
    ops = []
    for i in range(4):
        grp = []
        if i == 0: grp += [f"s_add_u32 m0, s{S_M0}, {slot*SLOT}", "s_nop 0"]
        grp.append(f"buffer_load_dwordx4 v{DV+i}, {sr(SRD_WS,4)}, s{SOFF} offen offset:{i*1024} lds")
        if i == 3: grp.append(f"s_add_u32 s{SOFF}, s{SOFF}, 1024")
        ops.append(grp)
    return ops

def emit(a, lst):
    for s in lst: a(s)

CEXP = ""
COPY = False
def copy_load():
    so = "s69" if "noload" in CEXP else f"s{S_CSRC}"
    return [f"buffer_load_dwordx4 {vr(VCX,4)}, v{L16}, {sr(SRD_CS,4)}, {so} offen"]
def copy_store(n):
    so = "s69" if "nostore" in CEXP else f"s{S_CDST}"
    fl = " sc1" if "sc1" in CEXP else ""
    fl += " sc0" if "sc0" in CEXP else ""
    fl += " nt" if "nt" in CEXP else ""
    return [f"s_waitcnt vmcnt({2*n})",
            f"buffer_store_dwordx4 {vr(VCX,4)}, v{VCD}, {sr(SRD_WS,4)}, {so} offen{fl}"]
def copy_next():
    return [f"s_add_u32 s{S_CSRC}, s{S_CSRC}, 8192",
            f"s_add_u32 s{S_CDST}, s{S_CDST}, 512",
            f"s_cmp_eq_u32 s{S_CNT}, 5",
            f"s_cselect_b32 s{S_T}, s{S_CM3}, 0",
            f"s_or_b32 s{S_CSRC}, s{S_CSRC}, s{S_T}",
            f"s_or_b32 s{S_CDST}, s{S_CDST}, s{S_T}",
            f"s_cmp_eq_u32 s{S_CNT}, 4",
            f"s_cselect_b32 s{S_CSRC}, s{S_CSO}, s{S_CSRC}",
            f"s_cselect_b32 s{S_CDST}, s{S_CDO}, s{S_CDST}",
            f"s_cselect_b32 s{SRD_CS}, s{S_PWO}, s{SRD_CS}",
            f"s_cselect_b32 s{SRD_CS+1}, s{S_PWO+1}, s{SRD_CS+1}",
            f"s_cselect_b32 s{SRD_CS+2}, {D*D*2}, s{SRD_CS+2}",
            f"s_cmp_eq_u32 s{S_CNT}, 3",
            f"s_cselect_b32 s{S_T}, {OOB}, 0",
            f"s_or_b32 s{S_CSRC}, s{S_CSRC}, s{S_T}",
            f"s_or_b32 s{S_CDST}, s{S_CDST}, s{S_T}"]

def interval(a, role, vswap, s, dma, first=False, pre=(), post=(), late=()):
    slot = s & 3
    xb = s & 1
    seq = ([] if first else [(7, 1-xb), (8, 1-xb), (9, 1-xb)]) + [(p, xb) for p in range(7)]
    fills = {}
    def add(i, j, lst): fills.setdefault((i, j), []).extend(lst)
    if first:
        emit(a, xread(xb, slot) + wread(0, slot) + wread(1, slot) + wread(2, slot))
        base = 0
    else:
        xr = xread(xb, slot)
        add(0, 0, xr[0:2]); add(0, 1, xr[2:4]); add(0, 2, wread(0, slot))
        add(1, 1, wread(1, slot))
        add(2, 1, wread(2, slot))
        base = 3
    for p in range(5):
        add(base + p, 1, wread(p + 3, slot))
    add(base + 5, 0, wread(8, slot))
    add(base + 5, 1, wread(9, slot))
    if dma:
        ops = dma_ops(role, (s + 3) & 3)
        pos = [(base + 0, 3), (base + 1, 3), (base + 2, 3), (base + 3, 3), (base + 4, 3)]
        if not first:
            pos = [(1, 3), (2, 3), (3, 3), (4, 3), (5, 3)]
        for g, o in zip(pos, ops): add(g[0], g[1], o)
    add(0, 3, list(pre))
    add(6, 3, list(post))
    for i, x in enumerate(late): add(7 + i // 6, (i % 6) // 2, [x])
    for i, (p, b) in enumerate(seq):
        if p < 7:
            a("s_waitcnt lgkmcnt(4)" if p < 6 else "s_waitcnt lgkmcnt(6)")
        for t in range(4):
            a(mfma(p, t, b, vswap, czero=(first and p < 7)))
            emit(a, fills.get((i, t), []))

def tail(a, vswap):
    for p in (7, 8, 9):
        for t in range(4):
            a(mfma(p, t, 1, vswap))

def mainloop(a, role, vswap):
    n = 5 if role == "W" else 4
    tag = f"{role}{int(vswap)}"
    for s in range(3):
        for g in dma_ops(role, s): emit(a, g)
    common_setup(a)
    if role == "W":
        for i in range(3): a("s_barrier")
    a(f"s_waitcnt vmcnt({2*n})")
    a("s_barrier")
    interval(a, role, vswap, 0, True, first=True, post=copy_load() if COPY else ())
    a(f"s_waitcnt vmcnt({2*n+(1 if COPY else 0)}) lgkmcnt(0)")
    a("s_barrier")
    a(f"s_mov_b32 s{S_CNT}, 7")
    stamp(a, 1)
    a(".p2align 6")
    a(f"L_g1_loop_{tag}:")
    for s in (1, 2, 3, 4):
        if s == 1 and COPY: interval(a, role, vswap, s, True, post=copy_load())
        elif s == 4 and COPY: interval(a, role, vswap, s, True, pre=copy_store(n), late=copy_next())
        else: interval(a, role, vswap, s, True)
        if s == 4:
            a(f"s_sub_u32 s{S_CNT}, s{S_CNT}, 1")
            a(f"s_cmp_lg_u32 s{S_CNT}, 0")
        a(f"s_waitcnt vmcnt({2*n + ((2 if s == 1 else 1) if COPY else 0)}) lgkmcnt(0)")
        a("s_barrier")
    a(f"s_cbranch_scc1 L_g1_loop_{tag}")
    interval(a, role, vswap, 29, False)
    a(f"s_waitcnt vmcnt({n}) lgkmcnt(0)")
    a("s_barrier")
    interval(a, role, vswap, 30, False)
    a(f"s_waitcnt vmcnt(0) lgkmcnt(0)")
    a("s_barrier")
    interval(a, role, vswap, 31, False)
    a(f"s_waitcnt lgkmcnt(0)")
    tail(a, vswap)
    a("s_branch L_g1_epi")

def f32hex(x):
    return "0x%08x" % struct.unpack("<I", struct.pack("<f", x))[0]

PROF = False
def stamp(a, i):
    if PROF:
        a(f"s_memtime s[{70+4*i}:{71+4*i}]")
        a(f"s_memrealtime s[{72+4*i}:{73+4*i}]")

def xstamp(i):
    return [f"s_memrealtime s[{86+2*i}:{87+2*i}]"] if PROF else []

def prof_store(a):
    if not PROF: return
    a(f"""
    s_waitcnt lgkmcnt(0)
    s_lshl_b32 s{S_T}, s2, 3
    s_add_u32 s{S_T}, s{S_T}, s{S_W}
    s_lshl_b32 s{S_T}, s{S_T}, 6
    s_add_u32 s{S_T}, s{S_T}, {PROF_OFF}
    s_mov_b32 s{SRD_WS+2}, 0x4000000
    """)
    for i in range(4):
        a(f"v_mov_b32 v{20+2*i}, s{70+4*i}")
        a(f"v_mov_b32 v{21+2*i}, s{72+4*i}")
    for i in range(4):
        a(f"v_mov_b32 v{16+i}, s{86+2*i}")
    a(f"""
    v_mov_b32 v2, 0
    buffer_store_dwordx4 v[20:23], v2, {sr(SRD_WS,4)}, s{S_T} offen
    buffer_store_dwordx4 v[24:27], v2, {sr(SRD_WS,4)}, s{S_T} offen offset:16
    buffer_store_dwordx4 v[16:19], v2, {sr(SRD_WS,4)}, s{S_T} offen offset:32
    """)

def common_setup(a):
    a(f"""
    v_lshrrev_b32 v3, 4, v1
    v_bfe_u32 v4, v1, 2, 2
    v_and_b32 v5, 3, v1
    v_mul_u32_u24 v6, 5120, v3
    v_lshl_add_u32 v6, v4, 7, v6
    v_lshl_add_u32 v6, v5, 3, v6
    v_lshrrev_b32 v7, 1, v4
    v_lshlrev_b32 v7, 5, v7
    v_and_b32 v8, 1, v3
    v_lshl_or_b32 v7, v8, 6, v7
    s_lshl_b32 s{S_T}, s{S_CG}, 6
    v_xor_b32 v8, s{S_T}, v7
    v_add_u32 v{TA+0}, v6, v8
    v_xor_b32 v8, 32, v8
    v_add_u32 v{TA+1}, v6, v8
    s_cmp_eq_u32 s{S_CL}, 0
    """)
    lab = a.newlabel("g1_taB")
    done = a.newlabel("g1_ta_done")
    a(f"s_cbranch_scc1 {lab}")
    a(f"s_lshl_b32 s{S_T}, s{S_CG}, 11")
    a(f"v_add_u32 v9, s{S_T}, v6")
    for b in range(4):
        a(f"v_xor_b32 v8, {32*b}, v7")
        a(f"v_add_u32 v{TA+2+b}, v9, v8")
    a(f"s_branch {done}")
    a(f"{lab}:")
    a(f"""
    v_mov_b32 v{TA+2}, v{TA+0}
    v_mov_b32 v{TA+3}, v{TA+1}
    v_add_u32 v{TA+4}, 2048, v{TA+0}
    v_add_u32 v{TA+5}, 2048, v{TA+1}
    """)
    a(f"{done}:")
    for i in range(6):
        a(f"v_add_u32 v{TA+6+i}, {2*SLOT}, v{TA+i}")
    a(f"""
    s_and_b32 s{S_T}, s{S_W}, 3
    s_lshl_b32 s{S_T+1}, s{S_T}, 12
    s_add_u32 s{S_T+1}, s{S_T+1}, {XREG}
    v_add_u32 v{XA}, s{S_T+1}, v{L16}
    v_add_u32 v{XA+1}, {2*SLOT}, v{XA}
    """)
    if COPY: a(f"""
    v_lshrrev_b32 v3, 3, v1
    v_and_b32 v4, 7, v1
    v_mul_u32_u24 v3, {WT_TILE}, v3
    v_lshl_add_u32 v{VCD}, v4, 4, v3
    s_lshr_b32 s{S_T}, s{S_W}, 1
    s_and_b32 s{S_T+1}, s{S_W}, 1
    s_mul_i32 s{S_T+2}, s2, 14
    s_add_u32 s{S_T+2}, s{S_T+2}, s{S_T}
    s_lshl_b32 s{S_T+3}, s2, 2
    s_add_u32 s{S_T+3}, s{S_T+3}, s{S_T}
    s_lshl_b32 s{S_T+4}, s{S_T+1}, 10
    s_mul_i32 s{S_T+5}, s{S_T+1}, {8*WT_TILE}
    s_add_u32 s{S_T+5}, s{S_T+5}, {WT_OFF}
    s_lshl_b32 s{S_CSRC}, s{S_T+2}, 11
    s_add_u32 s{S_CSRC}, s{S_CSRC}, s{S_T+4}
    s_lshl_b32 s{S_CDST}, s{S_T+2}, 7
    s_add_u32 s{S_CDST}, s{S_CDST}, s{S_T+5}
    s_lshl_b32 s{S_CSO}, s{S_T+3}, 11
    s_add_u32 s{S_CSO}, s{S_CSO}, s{S_T+4}
    s_add_u32 s{S_T+3}, s{S_T+3}, {F}
    s_lshl_b32 s{S_CDO}, s{S_T+3}, 7
    s_add_u32 s{S_CDO}, s{S_CDO}, s{S_T+5}
    s_cmp_ge_u32 s{S_W}, 4
    s_cselect_b32 s{S_CM3}, {OOB}, 0
    s_mov_b32 s69, {OOB}
    s_mov_b32 s{SRD_CS}, s{S_PWD}
    s_mov_b32 s{SRD_CS+1}, s{S_PWD+1}
    s_mov_b32 s{SRD_CS+2}, {F*D*2}
    s_mov_b32 s{SRD_CS+3}, 0x20000
    """)
    for p in (7, 8, 9):
        for t in range(4):
            for j in range(4):
                a(f"v_mov_b32 v{acc(p,t)+j}, 0")

def gen():
    a = Asm()
    a(f"""
    s_cmp_ge_u32 s2, 256
    s_cbranch_scc1 L_g1_end
    """)
    stamp(a, 0)
    a(f"""
    s_load_dwordx2 s[4:5], s[0:1], {KA_WQKV}
    s_load_dwordx4 s[8:11], s[0:1], {KA_WG}
    s_load_dwordx2 s[6:7], s[0:1], {KA_WS}
    s_load_dwordx2 s[{k_attn.S_PX}:{k_attn.S_PX+1}], s[0:1], {KA_X}
    s_load_dwordx4 s[{k_attn.S_PO}:{k_attn.S_PO+3}], s[0:1], {KA_OUT}
    s_load_dwordx2 s[{k_attn.S_PWO}:{k_attn.S_PWO+1}], s[0:1], {KA_WO}
    s_load_dwordx2 s[{k_attn.S_PWD}:{k_attn.S_PWD+1}], s[0:1], {KA_WD}
    v_lshrrev_b32 v2, 6, v0
    v_and_b32 v1, 63, v0
    s_and_b32 s{S_X8}, s2, 7
    s_bfe_u32 s{S_CL}, s2, 0x20003
    s_lshr_b32 s{S_MT}, s2, 5
    v_readfirstlane_b32 s{S_W}, v2
    v_lshlrev_b32 v{L16}, 4, v1
    s_lshr_b32 s{S_CG}, s{S_W}, 2
    s_cmp_ge_u32 s{S_W}, 4
    s_cbranch_scc1 L_g1_roleX
    """)
    a(f"""
    v_and_b32 v4, 7, v1
    v_bfe_u32 v5, v1, 4, 1
    v_lshlrev_b32 v5, 1, v5
    v_xor_b32 v4, v4, v5
    s_and_b32 s{S_T}, s{S_W}, 1
    s_lshl_b32 s{S_T}, s{S_T}, 2
    v_xor_b32 v4, s{S_T}, v4
    v_lshlrev_b32 v4, 4, v4
    v_lshrrev_b32 v3, 3, v1
    s_lshl_b32 s{S_T}, s{S_W}, 3
    v_add_u32 v3, s{S_T}, v3
    v_mov_b32 v6, 6144
    v_mov_b32 v7, 7168
    v_mad_u32_u24 v{DV+0}, v3, v6, v4
    v_mad_u32_u24 v{DV+2}, v3, v7, v4
    s_mul_i32 s{S_M0}, s{S_W}, 5120
    s_mov_b32 s{SOFF+0}, 0
    s_mov_b32 s{SOFF+1}, 0
    s_mov_b32 s{SOFF+2}, 0
    s_mov_b32 s{SINC+0}, {6144*32}
    s_mov_b32 s{SINC+2}, {7168*32}
    s_lshl_b32 s{S_T}, s{S_X8}, 7
    s_mul_i32 s{S_T+1}, s{S_X8}, {7*128}
    s_cmp_eq_u32 s{S_CL}, 0
    s_cbranch_scc0 L_g1_typeA
    """)
    def srd(g, lo, hi, col, total):
        comp = (g & 3)*1024
        b = SRD_G + 4*g
        a(f"s_sub_u32 s{S_T+7}, {col}, {comp}")
        a(f"s_ashr_i32 s{S_T+6}, s{S_T+7}, 31")
        a(f"s_add_u32 s{b}, s{lo}, s{S_T+7}")
        a(f"s_addc_u32 s{b+1}, s{hi}, s{S_T+6}")
        a(f"s_sub_u32 s{b+2}, {total}, s{S_T+7}")
        a(f"s_mov_b32 s{b+3}, 0x20000")
    TQ, TG = 1024*6144, 1024*7168
    a(f"""
    v_mov_b32 v{DV+1}, v{DV+0}
    s_mov_b32 s{SINC+1}, {6144*32}
    s_add_u32 s{S_T+2}, s{S_T}, 4096
    s_add_u32 s{S_T+3}, s{S_T}, 2048
    s_waitcnt lgkmcnt(0)
    """)
    srd(0, 4, 5, f"s{S_T+2}", TQ)
    srd(1, 4, 5, f"s{S_T}", TQ)
    srd(2, 4, 5, f"s{S_T+3}", TQ)
    srd(3, 8, 9, f"s{S_T+1}", TG)
    srd(4, 10, 11, f"s{S_T+1}", TG)
    a("s_branch L_g1_roleWV")
    a("L_g1_typeA:")
    a(f"""
    v_mov_b32 v{DV+1}, v{DV+2}
    s_mov_b32 s{SINC+1}, {7168*32}
    s_sub_u32 s{S_T+4}, s{S_CL}, 1
    s_lshl_b32 s{S_T+2}, s{S_T+4}, 11
    s_add_u32 s{S_T+2}, s{S_T+2}, s{S_T}
    s_add_u32 s{S_T+2}, s{S_T+2}, 1024
    s_lshl_b32 s{S_T+3}, s{S_T+4}, 8
    s_add_u32 s{S_T+3}, s{S_T+3}, s{S_T+1}
    s_add_u32 s{S_T+3}, s{S_T+3}, 128
    s_add_u32 s{S_T+4}, s{S_T+3}, 128
    s_waitcnt lgkmcnt(0)
    """)
    srd(0, 4, 5, f"s{S_T+2}", TQ)
    srd(1, 8, 9, f"s{S_T+3}", TG)
    srd(2, 10, 11, f"s{S_T+3}", TG)
    srd(3, 8, 9, f"s{S_T+4}", TG)
    srd(4, 10, 11, f"s{S_T+4}", TG)
    a(f"""
    s_cmp_eq_u32 s{S_CL}, 3
    s_cbranch_scc1 L_g1_roleWV
    """)
    ws_srd = f"""
    s_mov_b32 s{SRD_WS}, s6
    s_mov_b32 s{SRD_WS+1}, s7
    s_mov_b32 s{SRD_WS+2}, {WS_USED}
    s_mov_b32 s{SRD_WS+3}, 0x20000
    """
    a(ws_srd)
    mainloop(a, "W", False)
    a("L_g1_roleWV:")
    a(ws_srd)
    mainloop(a, "W", True)
    a("L_g1_roleX:")
    a(f"""
    s_sub_u32 s{S_T}, s{S_W}, 4
    s_lshl_b32 s{S_M0}, s{S_T}, 12
    s_add_u32 s{S_M0}, s{S_M0}, {XREG}
    s_lshl_b32 s{S_T}, s{S_T}, 2
    s_lshl_b32 s{S_T+1}, s{S_MT}, 4
    s_add_u32 s{S_T}, s{S_T}, s{S_T+1}
    s_lshl_b32 s{SOFF}, s{S_T}, 15
    s_add_u32 s{SOFF}, s{SOFF}, {XN_OFF}
    v_mov_b32 v{DV}, v{L16}
    v_add_u32 v{DV+1}, {1*31744}, v{L16}
    v_add_u32 v{DV+2}, {2*31744}, v{L16}
    v_add_u32 v{DV+3}, {3*31744}, v{L16}
    s_waitcnt lgkmcnt(0)
    """)
    a(ws_srd)
    k_ln.gen(a, S_W, SRD_WS, k_attn.S_PX, k_attn.S_PO + 2, S_T, xstamp)
    a(f"""
    s_cmp_eq_u32 s{S_CL}, 0
    s_cbranch_scc1 L_g1_roleXV
    s_cmp_eq_u32 s{S_CL}, 3
    s_cbranch_scc1 L_g1_roleXV
    """)
    mainloop(a, "X", False)
    a("L_g1_roleXV:")
    mainloop(a, "X", True)

    a("L_g1_epi:")
    stamp(a, 2)
    VQK, VV = 2, 3
    a(f"""
    s_and_b32 s{S_T}, s{S_W}, 3
    s_lshl_b32 s{S_T}, s{S_T}, 1
    s_lshl_b32 s{S_T+1}, s{S_MT}, 3
    s_add_u32 s{S_EP}, s{S_T}, s{S_T+1}
    s_lshl_b32 s{S_EP+1}, s{S_EP}, 11
    s_mul_i32 s{S_EP+2}, s{S_EP}, {2*112*1024}
    s_add_u32 s{S_EP+2}, s{S_EP+2}, {HF_OFF}
    s_mul_i32 s{S_EP+3}, s{S_X8}, 7
    s_lshl_b32 s{S_EP+4}, s{S_X8}, 1
    s_add_u32 s{S_EP+4}, s{S_EP+4}, s{S_CG}
    v_lshrrev_b32 v8, 4, v1
    v_and_b32 v9, 15, v1
    v_lshrrev_b32 v10, 1, v8
    v_and_b32 v11, 1, v8
    v_lshlrev_b32 v12, 4, v9
    v_lshl_add_u32 v12, v11, 9, v12
    v_lshl_add_u32 v{VQK}, v10, 10, v12
    v_lshl_add_u32 v{VV}, v10, 8, v12
    s_mov_b32 s{S_T+4}, {f32hex(QSCALE)}
    s_mov_b32 s{S_T+5}, s{S_T+4}
    s_mov_b32 s{k_attn.SRD_DBG}, s{k_attn.S_PO+2}
    s_mov_b32 s{k_attn.SRD_DBG+1}, s{k_attn.S_PO+3}
    s_mov_b32 s{k_attn.SRD_DBG+2}, 256
    s_mov_b32 s{k_attn.SRD_DBG+3}, 0x20000
    s_cmp_eq_u32 s{S_W}, 0
    s_cselect_b32 s{k_attn.S_ZO}, 0, {OOB}
    v_and_b32 v{k_attn.VZA}, 7, v1
    v_lshlrev_b32 v{k_attn.VZA}, 5, v{k_attn.VZA}
    buffer_load_dword v{k_attn.VZ}, v{k_attn.VZA}, {sr(k_attn.SRD_DBG,4)}, s{k_attn.S_ZO} offen sc0 sc1
    """)
    def pack(pa, pb, t):
        da, db = acc(pa, t), acc(pb, t)
        a(f"v_cvt_pk_bf16_f32 v{da}, v{da}, v{da+1}")
        a(f"v_cvt_pk_bf16_f32 v{da+1}, v{da+2}, v{da+3}")
        a(f"v_cvt_pk_bf16_f32 v{da+2}, v{db}, v{db+1}")
        a(f"v_cvt_pk_bf16_f32 v{da+3}, v{db+2}, v{db+3}")
        return da
    def qk_store(pa, pb, scale, sreg):
        for t in range(4):
            if scale:
                for p in (pa, pb):
                    d = acc(p, t)
                    a(f"v_pk_mul_f32 {vr(d,2)}, {vr(d,2)}, {sr(S_T+4,2)}")
                    a(f"v_pk_mul_f32 {vr(d+2,2)}, {vr(d+2,2)}, {sr(S_T+4,2)}")
            d = pack(pa, pb, t)
            a(f"buffer_store_dwordx4 {vr(d,4)}, v{VQK}, {sr(SRD_WS,4)}, s{sreg} offen offset:{(t&1)*256 + (t>>1)*2048}{EFL}")
    def v_store(pa, pb, sreg):
        for t in range(4):
            d = pack(pa, pb, t)
            a("s_nop 1")
            a(f"v_permlane32_swap_b32 v{d}, v{d+2}")
            a(f"v_permlane32_swap_b32 v{d+1}, v{d+3}")
            a("s_nop 1")
            a(f"buffer_store_dwordx4 {vr(d,4)}, v{VV}, {sr(SRD_WS,4)}, s{sreg} offen offset:{(t&1)*1024 + (t>>1)*2048}{EFL}")
    def h_pack(g0, dst):
        for t in range(4):
            for g in (g0, g0+2):
                dg, du = acc(g, t), acc(g+1, t)
                for j in range(4):
                    a(f"v_max_f32 v{dg+j}, 0, v{dg+j}")
                a(f"v_pk_mul_f32 {vr(dg,2)}, {vr(dg,2)}, {vr(du,2)}")
                a(f"v_pk_mul_f32 {vr(dg+2,2)}, {vr(dg+2,2)}, {vr(du+2,2)}")
            da, db = acc(g0, t), acc(g0+2, t)
            for i, src in enumerate((da, da+2, db, db+2)):
                a(f"v_cvt_pk_bf16_f32 v{dst[t]+i}, v{src}, v{src+1}")
    def head_dest(dst, base, head_add):
        a(f"s_add_u32 s{dst}, s{S_EP+4}, {head_add}")
        a(f"s_lshl_b32 s{dst}, s{dst}, 17")
        a(f"s_add_u32 s{dst}, s{dst}, s{S_EP+1}")
        a(f"s_add_u32 s{dst}, s{dst}, {base}")
    a(f"s_cmp_eq_u32 s{S_CL}, 0")
    a("s_cbranch_scc1 L_g1_eB")
    a(f"""
    s_sub_u32 s{S_T}, s{S_CL}, 1
    s_lshl_b32 s{S_T+1}, s{S_T}, 1
    s_add_u32 s{S_T+1}, s{S_T+1}, s{S_EP+3}
    s_add_u32 s{S_T+1}, s{S_T+1}, s{S_CG}
    s_add_u32 s{S_T+1}, s{S_T+1}, 1
    s_lshl_b32 s{S_T+1}, s{S_T+1}, 11
    s_add_u32 s{S_EP+5}, s{S_T+1}, s{S_EP+2}
    s_lshl_b32 s{S_T}, s{S_T}, 22
    s_add_u32 s{S_T}, s{S_T}, {QF_OFF}
    """)
    head_dest(S_EP+6, f"s{S_T}", 16)
    a(f"s_mov_b32 s{k_attn.S_HA}, s{S_EP+5}")
    assert k_attn.S_HN == S_EP+5
    a(f"s_add_u32 s{k_attn.S_HN}, s{S_EP+5}, 1024")
    a(f"s_cmp_eq_u32 s{S_CL}, 3")
    a("s_cbranch_scc1 L_g1_eAV")
    a(f"s_cmp_eq_u32 s{S_CL}, 1")
    a(f"s_cselect_b32 s{S_T+4}, s{S_T+4}, 1.0")
    a(f"s_mov_b32 s{S_T+5}, s{S_T+4}")
    qk_store(0, 1, True, S_EP+6)
    a("s_branch L_g1_fin")
    a("L_g1_eAV:")
    v_store(0, 1, S_EP+6)
    a("s_branch L_g1_fin")
    a("L_g1_eB:")
    a(f"""
    s_lshl_b32 s{S_T+1}, s{S_EP+3}, 1
    s_add_u32 s{S_T+1}, s{S_T+1}, s{S_CG}
    s_lshl_b32 s{S_T+1}, s{S_T+1}, 10
    s_add_u32 s{S_EP+5}, s{S_T+1}, s{S_EP+2}
    """)
    a(f"s_mov_b32 s{k_attn.S_HA}, {k_attn.OOBH}")
    head_dest(S_EP+6, VF_OFF, 0)
    v_store(0, 1, S_EP+6)
    head_dest(S_EP+7, QF_OFF, 0)
    qk_store(2, 4, True, S_EP+7)
    head_dest(S_EP+6, KF_OFF, 0)
    qk_store(3, 5, False, S_EP+6)
    a("L_g1_fin:")
    a(f"""
    s_and_b32 s{S_T}, s2, 7
    s_lshl_b32 s{S_T}, s{S_T}, 7
    s_lshr_b32 s{S_T+1}, s2, 3
    s_lshl_b32 s{S_T+1}, s{S_T+1}, 2
    s_add_u32 s{S_T}, s{S_T}, s{S_T+1}
    s_add_u32 s{S_T}, s{S_T}, {FLQ_OFF}
    s_cmp_eq_u32 s{S_W}, 0
    s_cselect_b32 s{S_T}, s{S_T}, {OOB}
    v_mov_b32 v2, 0
    v_mov_b32 v3, 1
    s_waitcnt vmcnt(0)
    s_barrier
    buffer_store_dword v3, v2, {sr(SRD_WS,4)}, s{S_T} offen sc0 sc1
    """)
    for x in xstamp(0): a(x)
    a(f"s_mov_b32 s{k_attn.S_HB}, {k_attn.OOBH}")
    h_pack(6, k_attn.VHB)
    a(f"s_cmp_eq_u32 s{S_CL}, 0")
    a("s_cbranch_scc1 L_g1_hb")
    h_pack(2, k_attn.VHA)
    a("L_g1_hb:")
    if PROF:
        stamp(a, 3)
        prof_store(a)
    return a.text() + k_attn.gen(tail_label="L_g1_end")
```

```python
from asmlib import *
from layout import *

LDS_OFF = 147456
POLL_MAX = 1 << 16
STFL = " sc0 sc1"

def rsum8(a, v, t):
    a(f"""
    s_nop 1
    v_add_f32_dpp v{v}, v{v}, v{v} row_ror:8 row_mask:0xf bank_mask:0xf
    s_nop 0
    v_mov_b32 v{t}, v{v}
    s_nop 1
    v_permlane16_swap_b32 v{v}, v{t}
    s_nop 0
    v_add_f32 v{v}, v{v}, v{t}
    s_nop 0
    v_mov_b32 v{t}, v{v}
    s_nop 1
    v_permlane32_swap_b32 v{v}, v{t}
    s_nop 0
    v_add_f32 v{v}, v{v}, v{t}
    """)

def gen(a, S_W, SRD_WS, S_PX, S_PDBG, S_T, xstamp):
    X = 112
    R = 96
    T0, T1, T2, T3, M, RS = 144, 145, 146, 147, 148, 149
    SX, SD = 12, 16
    S_ROW, S_D0, S_D1, S_MSK, S_MB, S_CT, S_POLL = 20, 21, 22, 23, 24, 25, 26
    ws = sr(SRD_WS, 4)
    a(f"""
    s_sub_u32 s{S_T}, s{S_W}, 4
    v_mov_b32 v2, s{S_T}
    v_and_b32 v3, 7, v1
    v_lshrrev_b32 v4, 3, v1
    v_lshlrev_b32 v5, 11, v3
    v_lshl_add_u32 v5, v2, 9, v5
    v_lshl_add_u32 v5, v4, 4, v5
    s_lshl_b32 s{S_ROW}, s2, 14
    s_mov_b32 s{SX}, s{S_PX}
    s_mov_b32 s{SX+1}, s{S_PX+1}
    s_mov_b32 s{SX+2}, {S*D*2}
    s_mov_b32 s{SX+3}, 0x20000
    """)
    for i in range(4):
        a(f"buffer_load_dwordx4 v[{R+4*i}:{R+4*i+3}], v5, {sr(SX,4)}, s{S_ROW} offen offset:{128*i}")
    a(f"""
    s_lshl_b32 s{S_T}, s2, 2
    s_add_u32 s{S_T+1}, s{S_T}, {FLO_OFF}
    s_add_u32 s{S_T}, s{S_T}, {FLW_OFF}
    s_and_b32 s{S_T+2}, s2, 7
    s_lshl_b32 s{S_T+2}, s{S_T+2}, 7
    s_lshr_b32 s{S_T+3}, s2, 3
    s_lshl_b32 s{S_T+3}, s{S_T+3}, 2
    s_add_u32 s{S_T+2}, s{S_T+2}, s{S_T+3}
    s_add_u32 s{S_T+2}, s{S_T+2}, {FLQ_OFF}
    s_lshl_b32 s{S_MB}, s2, 7
    s_add_u32 s{S_MB}, s{S_MB}, {MB_OFF}
    v_mov_b32 v8, s{S_T}
    v_mov_b32 v9, 0
    s_cmp_eq_u32 s{S_W}, 4
    s_cselect_b32 s{S_T+3}, 0, 0x7fff0000
    v_writelane_b32 v8, s{S_T+1}, 1
    s_nop 1
    v_writelane_b32 v8, s{S_T+2}, 2
    s_nop 1
    v_writelane_b32 v8, s{S_MB}, 3
    s_nop 1
    buffer_store_dword v9, v8, {ws}, s{S_T+3} offen sc0 sc1
    """)
    a(f"""
    v_lshrrev_b32 v6, 5, v1
    v_lshl_add_u32 v6, v2, 3, v6
    v_lshlrev_b32 v6, 10, v6
    v_and_b32 v7, 3, v4
    v_lshl_add_u32 v6, v7, 8, v6
    s_and_b32 s{S_T}, s2, 1
    s_lshl_b32 s{S_T}, s{S_T}, 3
    v_add_u32 v7, s{S_T}, v3
    v_lshl_add_u32 v6, v7, 4, v6
    s_lshr_b32 s{S_D0}, s2, 1
    s_lshl_b32 s{S_D0}, s{S_D0}, 15
    s_add_u32 s{S_D0}, s{S_D0}, {XN_OFF}
    s_add_u32 s{S_D1}, s{S_D0}, 4096
    v_lshlrev_b32 v7, 2, v3
    v_add_u32 v7, {LDS_OFF}, v7
    v_lshl_add_u32 v8, v2, 5, v7
    s_mov_b32 s{S_MSK}, 0xffff0000
    s_mov_b32 s{SD}, s{S_PDBG}
    s_mov_b32 s{SD+1}, s{S_PDBG+1}
    s_mov_b32 s{SD+2}, 256
    s_mov_b32 s{SD+3}, 0x20000
    s_lshr_b32 s{S_CT}, s2, 5
    s_lshl_b32 s{S_CT}, s{S_CT}, 5
    s_mov_b32 s{S_POLL}, 0
    """)
    for i in range(4):
        a(f"s_waitcnt vmcnt({3-i+1})")
        for j in range(4):
            a(f"v_lshlrev_b32 v{X+8*i+2*j}, 16, v{R+4*i+j}")
            a(f"v_and_b32 v{X+8*i+2*j+1}, s{S_MSK}, v{R+4*i+j}")
    for x in xstamp(0): a(x)
    def wgsum(off):
        a(f"""
        ds_write_b32 v8, v{R} offset:{off}
        s_waitcnt lgkmcnt(0)
        s_barrier
        ds_read_b32 v{T0}, v7 offset:{off}
        ds_read_b32 v{T1}, v7 offset:{off+32}
        ds_read_b32 v{T2}, v7 offset:{off+64}
        ds_read_b32 v{T3}, v7 offset:{off+96}
        s_waitcnt lgkmcnt(0)
        v_add_f32 v{T0}, v{T0}, v{T1}
        v_add_f32 v{T2}, v{T2}, v{T3}
        v_add_f32 v{T0}, v{T0}, v{T2}
        """)
    def tree():
        for step in (8, 4, 2, 1):
            for j in range(step):
                a(f"v_add_f32 v{R+j}, v{R+j}, v{R+j+step}")
        rsum8(a, R, T0)
    for j in range(16):
        a(f"v_add_f32 v{R+j}, v{X+2*j}, v{X+2*j+1}")
    tree()
    wgsum(0)
    a(f"v_mul_f32 v{M}, {1.0/1024}, v{T0}")
    for j in range(16):
        a(f"v_sub_f32 v{R+j}, v{X+2*j}, v{M}")
        a(f"v_sub_f32 v{T1}, v{X+2*j+1}, v{M}")
        a(f"v_mul_f32 v{R+j}, v{R+j}, v{R+j}")
        a(f"v_fmac_f32 v{R+j}, v{T1}, v{T1}")
    tree()
    wgsum(128)
    a(f"""
    v_mul_f32 v{RS}, {1.0/1024}, v{T0}
    v_cvt_pk_bf16_f32 v{M}, v{M}, v{M}
    v_cvt_pk_bf16_f32 v{RS}, v{RS}, v{RS}
    v_and_b32 v{M}, s{S_MSK}, v{M}
    v_and_b32 v{RS}, s{S_MSK}, v{RS}
    v_add_f32 v{RS}, 0x3727c5ac, v{RS}
    v_cvt_pk_bf16_f32 v{RS}, v{RS}, v{RS}
    v_and_b32 v{RS}, s{S_MSK}, v{RS}
    v_sqrt_f32 v{RS}, v{RS}
    s_nop 0
    v_cvt_pk_bf16_f32 v{RS}, v{RS}, v{RS}
    v_and_b32 v{RS}, s{S_MSK}, v{RS}
    v_rcp_f32 v{RS}, v{RS}
    s_nop 0
    """)
    for j in range(16):
        a(f"v_sub_f32 v{X+2*j}, v{X+2*j}, v{M}")
        a(f"v_sub_f32 v{X+2*j+1}, v{X+2*j+1}, v{M}")
        a(f"v_cvt_pk_bf16_f32 v{T0}, v{X+2*j}, v{X+2*j+1}")
        a(f"v_lshlrev_b32 v{T1}, 16, v{T0}")
        a(f"v_and_b32 v{T2}, s{S_MSK}, v{T0}")
        a(f"v_mul_f32 v{T1}, v{T1}, v{RS}")
        a(f"v_mul_f32 v{T2}, v{T2}, v{RS}")
        a(f"v_cvt_pk_bf16_f32 v{R+j}, v{T1}, v{T2}")
    for i in range(4):
        a(f"buffer_store_dwordx4 v[{R+4*i}:{R+4*i+3}], v6, {ws}, s{S_D0+(i>>1)} offen offset:{2048*(i&1)}{STFL}")
    a(f"""
    v_mov_b32 v2, 0
    v_mov_b32 v3, 1
    s_waitcnt vmcnt(0)
    """)
    for x in xstamp(1): a(x)
    a(f"""
    s_barrier
    s_cmp_eq_u32 s{S_W}, 4
    s_cbranch_scc0 L_ln_wait
    s_mov_b64 exec, 1
    buffer_atomic_add v3, v2, {sr(SD,4)}, s{S_CT} offen sc0 sc1
    s_mov_b64 exec, -1
    s_waitcnt vmcnt(0)
    v_readfirstlane_b32 s{S_T}, v3
    s_cmp_eq_u32 s{S_T}, 31
    s_cbranch_scc0 L_ln_wait
    v_and_b32 v4, 31, v1
    v_lshlrev_b32 v4, 7, v4
    s_lshr_b32 s{S_T}, s2, 5
    s_lshl_b32 s{S_T}, s{S_T}, 12
    s_add_u32 s{S_T}, s{S_T}, {MB_OFF}
    v_mov_b32 v3, 1
    buffer_store_dword v3, v4, {ws}, s{S_T} offen sc0 sc1
L_ln_wait:
    """)
    for x in xstamp(2): a(x)
    a(f"""
L_ln_poll:
    buffer_load_dword v3, v2, {ws}, s{S_MB} offen sc0 sc1
    s_add_u32 s{S_POLL}, s{S_POLL}, 1
    s_waitcnt vmcnt(0)
    v_readfirstlane_b32 s{S_T}, v3
    s_cmp_eq_u32 s{S_T}, 1
    s_cbranch_scc1 L_ln_go
    s_cmp_lt_u32 s{S_POLL}, {POLL_MAX}
    s_cbranch_scc1 L_ln_poll
L_ln_go:
    """)
    for x in xstamp(3): a(x)
```
